```python
import torch

def _softmax(x, axis=-1):
    return torch.softmax(x, dim=axis)
def _gelu(x):
    return torch.nn.functional.gelu(x, approximate="tanh")
def _silu(x):
    return torch.nn.functional.silu(x)
def _sigmoid(x):
    return torch.sigmoid(x)
def _layernorm(x, axis=-1, eps=1e-5):
    m = x.mean(dim=axis, keepdim=True)
    v = x.var(dim=axis, keepdim=True, unbiased=False)
    return (x - m) / torch.sqrt(v + eps)
def _scatter_add(tgt, idx, src, axis=0):
    return tgt.clone().index_add_(axis, idx, src)
def _segment_sum(src, seg, n):
    out = torch.zeros((n,) + src.shape[1:], dtype=src.dtype)
    return out.index_add_(0, seg, src)
def _pad(x, pw):
    flat = tuple(v for pair in reversed(pw) for v in pair)
    return torch.nn.functional.pad(x, flat)

kernel_name = 'standalone__paged_block_table_kv_radixattention__sampling'

def setup_inputs():

    _w = (lambda a: (lambda t: t.to(torch.bfloat16) if t.is_floating_point() else t)(torch.as_tensor(a)))
    B, H, Hkv, Dh = 8, 32, 32, 128
    Lk = 2048
    bs = 16
    nb = max(2, Lk // bs)
    P = max(1, nb // 2)
    n_phys = P + B * (nb - P)
    shared = torch.arange(P, dtype=torch.int64)
    priv = P + torch.arange(B * (nb - P), dtype=torch.int64).reshape(B, nb - P)
    bt = torch.cat([torch.tile(shared[None, :], (B, 1)), priv], dim=1)
    ctx = nb * bs - (torch.arange(1, B + 1, dtype=torch.int64) * 2654435761) % max(1, (nb * bs - P * bs) // 2)
    return {
        "q": _w((lambda *s: torch.randn(*s, dtype=torch.bfloat16) * 0.8)(B, H, Dh)),
        "k_cache": _w((lambda *s: torch.randn(*s, dtype=torch.bfloat16) * 0.8)(n_phys, bs, Hkv, Dh)),
        "v_cache": _w((lambda *s: torch.randn(*s, dtype=torch.bfloat16) * 0.05)(n_phys, bs, Hkv, Dh)),
        "block_table": _w(bt.to(torch.int64)),
        "ctx_lens": _w(torch.as_tensor(ctx).to(torch.int64)),
    }

def reference(q, k_cache, v_cache, block_table, ctx_lens):
    B, H, Dh = q.shape
    n_phys, bs, Hkv, _ = k_cache.shape
    nb = block_table.shape[1]
    Lk = nb * bs
    rep = H // Hkv
    k = k_cache[block_table].reshape(B, Lk, Hkv, Dh)
    v = v_cache[block_table].reshape(B, Lk, Hkv, Dh)
    k = (lambda x, n, axis: torch.repeat_interleave(x, n, dim=axis))(k, rep, axis=2)
    v = (lambda x, n, axis: torch.repeat_interleave(x, n, dim=axis))(v, rep, axis=2)
    scores = torch.einsum("bhd,bkhd->bhk", q, k) * (Dh ** -0.5)
    pos = torch.arange(Lk)
    valid = pos[None, :] < ctx_lens[:, None]
    scores = torch.where(valid[:, None, :], scores, -1e9)
    p = _softmax(scores, axis=-1)
    return torch.einsum("bhk,bkhd->bhd", p, v)
```

```python
import sys, struct

NAME = 'standalone__paged_block_table_kv_radixattention__sampling'
KV_BYTES = 75497472
NS = 7
DUMP = 8704
OWNML = 0
CNT = 512
OWN = 1024
FD = 8192
LDS = FD + NS * DUMP
ROW = 640
WS_USED = 32 * 8 * 8 * ROW

def f32bits(x):
    return struct.unpack('<I', struct.pack('<f', x))[0]

C_SCALE = f32bits(128 ** -0.5 * 1.4426950408889634)
SENT_RAW = f32bits(-1e30)
import numpy as np
SENT_MC = f32bits(float(np.float32(-1e30) * np.float32(128 ** -0.5 * 1.4426950408889634)))

def gen(pol='nt', ts=False, header=None):
    L = []
    def A(s): L.append('    ' + s)
    def lab(s): L.append(s + ':')
    def C(s): L.append('    ; ' + s)
    sW = 's3'
    pq, pk, pv, pbt, pctx, pout, pdbg, pws = 4, 6, 8, 10, 12, 14, 16, 18
    rK, rV, rBT, rX, rWS, rY = 20, 24, 28, 32, 36, 40
    sN = 44
    sCum = 52
    sH, sI, sH256, sS, sQ, sOff, sF, sFe, sOwn, sU, sUf, sUc, sK, sUn = ['s%d' % i for i in range(60, 74)]
    ODD = 's[74:75]'; BASE = 's[76:77]'
    selLo, selHi, sC = 's78', 's79', 's80'
    sOA, sOB, sDA, sDB = 's81', 's82', 's83', 's84'
    sT = 's85'
    MA = 's[86:87]'; MB = 's[88:89]'
    MJ = ['s[90:91]', 's[92:93]', 's[94:95]', 's[96:97]']
    sT2, sT3 = 's98', 's99'
    def srd(r): return 's[%d:%d]' % (r, r + 3)
    def mk_srd(r, p, nbytes):
        A('s_mov_b32 s%d, s%d' % (r, p))
        A('s_and_b32 s%d, s%d, 0xffff' % (r + 1, p + 1))
        A('s_mov_b32 s%d, %d' % (r + 2, nbytes))
        A('s_mov_b32 s%d, 0x20000' % (r + 3))
    vKo = [8, 9]; vVo = [10, 11, 12, 13]
    vCtx, vNinf, vPm, vMr, vMc, vL, vSo, vD, vLA, vLB = range(14, 24)
    vP = 24; vQ = 28; vS = 36; vO = 52; vK = 84; vV = 116
    NV = 148
    vBT = vV
    def v(i): return 'v%d' % i
    def vr(i, n): return 'v[%d:%d]' % (i, i + n - 1)
    tsn = [0]
    def stamp(idx):
        if ts:
            A('s_memrealtime s[100:101]')
            A('s_waitcnt lgkmcnt(0)')
            A('v_writelane_b32 v148, s100, %d' % idx)

    lab(NAME + '_kernel')
    A('s_cmp_ge_u32 s2, 256')
    A('s_cbranch_scc1 L_end')
    A('s_load_dwordx16 s[4:19], s[0:1], 0')
    if ts:
        A('v_mov_b32 v148, 0')
        stamp(0)
    A('v_lshrrev_b32 v1, 6, v0')
    A('v_and_b32 v0, 63, v0')
    A('v_readfirstlane_b32 %s, v1' % sW)
    C('h = (wg & 7) | ((wg >> 6) << 3) ; i = (wg >> 3) & 7')
    A('s_lshr_b32 %s, s2, 6' % sT)
    A('s_lshl_b32 %s, %s, 3' % (sT, sT))
    A('s_and_b32 %s, s2, 7' % sH)
    A('s_or_b32 %s, %s, %s' % (sH, sH, sT))
    A('s_bfe_u32 %s, s2, 0x30003' % sI)
    A('s_lshl_b32 %s, %s, 8' % (sH256, sH))
    C('lane constants')
    A('v_lshlrev_b32 v1, 3, v0')
    A('v_lshrrev_b32 v2, 4, v0')
    A('v_and_b32 v3, 15, v0')
    A('v_bfe_u32 v4, v0, 1, 3')
    A('v_and_b32 v5, 1, v0')
    A('v_lshlrev_b32 %s, 13, v4' % v(vKo[0]))
    A('v_lshl_add_u32 %s, v2, 5, %s' % (v(vKo[0]), v(vKo[0])))
    A('v_lshl_add_u32 %s, v5, 4, %s' % (v(vKo[0]), v(vKo[0])))
    A('v_add_u32 %s, 0x10000, %s' % (v(vKo[1]), v(vKo[0])))
    A('v_lshlrev_b32 %s, 14, v2' % v(vVo[0]))
    A('v_lshl_add_u32 %s, v3, 4, %s' % (v(vVo[0]), v(vVo[0])))
    A('v_add_u32 %s, 0x2000, %s' % (v(vVo[1]), v(vVo[0])))
    A('v_add_u32 %s, 0x10000, %s' % (v(vVo[2]), v(vVo[0])))
    A('v_add_u32 %s, 0x12000, %s' % (v(vVo[3]), v(vVo[0])))
    A('v_lshlrev_b32 v6, 2, v4')
    A('s_waitcnt lgkmcnt(0)')
    A('s_load_dwordx8 s[%d:%d], s[%d:%d], 0' % (sN, sN + 7, pctx, pctx + 1))
    mk_srd(rBT, pbt, 4096)
    for b in range(8):
        A('buffer_load_dwordx2 %s, v1, %s, 0 offen offset:%d' % (vr(vBT + 2 * b, 2), srd(rBT), 512 * b))
    mk_srd(rY, pctx, 32)
    mk_srd(rX, pq, 65536)
    A('buffer_load_dword %s, v6, %s, 0 offen' % (v(vCtx), srd(rY)))
    A('buffer_load_dwordx4 %s, %s, %s, %s offen' % (vr(vQ, 4), v(vKo[0]), srd(rX), sH256))
    A('buffer_load_dwordx4 %s, %s, %s, %s offen offset:128' % (vr(vQ + 4, 4), v(vKo[0]), srd(rX), sH256))
    mk_srd(rK, pk, KV_BYTES)
    mk_srd(rV, pv, KV_BYTES)
    C('constants')
    A('s_mov_b32 s74, 0xaaaaaaaa'); A('s_mov_b32 s75, 0xaaaaaaaa')
    A('s_mov_b32 s76, 0x00030003'); A('s_mov_b32 s77, 0x00030003')
    A('s_mov_b32 %s, 0x05040100' % selLo); A('s_mov_b32 %s, 0x07060302' % selHi)
    A('s_mov_b32 %s, 0x%08x' % (sC, C_SCALE))
    A('v_mov_b32 %s, 0xff800000' % v(vNinf))
    A('v_mov_b32 v7, 0xffff0000')
    A('v_mov_b32 %s, 0xffff' % v(vPm))
    A('v_cndmask_b32 %s, %s, v7, %s' % (v(vPm), v(vPm), ODD))
    A('v_lshl_add_u32 v7, v2, 1, v5')
    C('LDS counter init (helper)')
    A('v_mov_b32 v1, %d' % CNT)
    A('v_mov_b32 v6, 0')
    A('s_cmp_lg_u32 %s, %d' % (sW, NS))
    A('s_cbranch_scc1 L_noinit')
    A('ds_write_b32 v1, v6')
    lab('L_noinit')
    C('lane-parallel list position x = 2w + 14*(k>>1) + (k&1)')
    A('v_lshrrev_b32 v1, 1, v0')
    A('s_lshl_b32 %s, %s, 1' % (sT, sW))
    A('v_mad_u32_u24 v1, v1, %d, %s' % (2 * NS, sT))
    A('v_add_u32 v1, v1, v5')
    for r in range(32):
        A('v_mov_b32 %s, 0' % v(vO + r))
    A('v_mov_b32 %s, 0x%08x' % (v(vMr), SENT_RAW))
    A('v_mov_b32 %s, 0x%08x' % (v(vMc), SENT_MC))
    A('v_mov_b32 %s, 0' % v(vL))
    A('s_waitcnt lgkmcnt(0)')
    C('ctx -> nb (ctx<=0 acts as 2048 with q=0; clamp to 2048)')
    for b in range(8):
        s = 's%d' % (sN + b)
        A('s_cmp_gt_i32 %s, 0' % s)
        A('s_cselect_b32 %s, %s, 0x800' % (s, s))
        A('s_min_i32 %s, %s, 0x800' % (s, s))
        A('s_add_u32 %s, %s, 15' % (s, s))
        A('s_lshr_b32 %s, %s, 4' % (s, s))
    A('s_max_u32 %s, s%d, s%d' % (sS, sN, sN + 1))
    for b in range(2, 8):
        A('s_max_u32 %s, %s, s%d' % (sS, sS, sN + b))
    if ts: stamp(1)
    A('s_waitcnt vmcnt(3)')
    if ts: stamp(2)
    C('common-prefix length')
    for st in range(2):
        r = lambda b: v(vBT + 2 * b + st)
        mx, mn = v(vS + 2 * st), v(vS + 2 * st + 1)
        A('v_max3_u32 %s, %s, %s, %s' % (mx, r(0), r(1), r(2)))
        A('v_min3_u32 %s, %s, %s, %s' % (mn, r(0), r(1), r(2)))
        A('v_max3_u32 %s, %s, %s, %s' % (mx, mx, r(3), r(4)))
        A('v_min3_u32 %s, %s, %s, %s' % (mn, mn, r(3), r(4)))
        A('v_max3_u32 %s, %s, %s, %s' % (mx, mx, r(5), r(6)))
        A('v_min3_u32 %s, %s, %s, %s' % (mn, mn, r(5), r(6)))
        A('v_max_u32 %s, %s, %s' % (mx, mx, r(7)))
        A('v_min_u32 %s, %s, %s' % (mn, mn, r(7)))
        A('v_cmp_ne_u32 %s, %s, %s' % ((MA, MB)[st], mx, mn))
    A('s_nop 1')
    A('s_ff1_i32_b64 %s, %s' % (sT, MA))
    A('s_ff1_i32_b64 %s, %s' % (sT2, MB))
    A('s_lshl_b32 %s, %s, 1' % (sT, sT))
    A('s_lshl1_add_u32 %s, %s, 1' % (sT2, sT2))
    A('s_min_u32 %s, %s, %s' % (sS, sS, sT))
    A('s_min_u32 %s, %s, %s' % (sS, sS, sT2))
    C('n_b, T, Q')
    A('s_mov_b32 %s, %s' % (sQ, sS))
    for b in range(8):
        s = 's%d' % (sN + b)
        A('s_sub_i32 %s, %s, %s' % (s, s, sS))
        A('s_max_i32 %s, %s, 0' % (s, s))
        A('s_add_u32 %s, %s, %s' % (sQ, sQ, s))
    A('s_add_u32 %s, %s, 7' % (sQ, sQ))
    A('s_lshr_b32 %s, %s, 3' % (sQ, sQ))
    C('own_b = min(n_b,Q); cum excess; off_i = sum_{b<i} (Q-own_b); own_i')
    A('s_mov_b32 %s, 0' % sOff)
    A('s_mov_b32 %s, 0' % sT2)
    A('s_mov_b32 %s, 0' % sOwn)
    for b in range(8):
        s = 's%d' % (sN + b)
        A('s_mov_b32 s%d, %s' % (sCum + b, sT2))
        A('s_min_u32 %s, %s, %s' % (sT, s, sQ))
        A('s_sub_u32 %s, %s, %s' % (sT3, s, sT))
        A('s_add_u32 %s, %s, %s' % (sT2, sT2, sT3))
        A('s_cmp_eq_u32 %s, %d' % (sI, b))
        A('s_cselect_b32 %s, %s, %s' % (sOwn, sT, sOwn))
        if b < 7:
            A('s_sub_u32 %s, %s, %s' % (sT, sQ, sT))
            A('s_cmp_gt_u32 %s, %d' % (sI, b))
            A('s_cselect_b32 %s, %s, 0' % (sT, sT))
            A('s_add_u32 %s, %s, %s' % (sOff, sOff, sT))
    C('F = clamp(S + cum8 - off, 0, Q - own)')
    A('s_add_u32 %s, %s, %s' % (sF, sS, sT2))
    A('s_sub_i32 %s, %s, %s' % (sF, sF, sOff))
    A('s_max_i32 %s, %s, 0' % (sF, sF))
    A('s_sub_u32 %s, %s, %s' % (sT, sQ, sOwn))
    A('s_min_u32 %s, %s, %s' % (sF, sF, sT))
    A('s_add_u32 %s, %s, 1' % (sUf, sF))
    A('s_lshr_b32 %s, %s, 1' % (sUf, sUf))
    A('s_lshl_b32 %s, %s, 1' % (sFe, sUf))
    A('s_add_u32 %s, %s, 1' % (sU, sOwn))
    A('s_lshr_b32 %s, %s, 1' % (sU, sU))
    A('s_add_u32 %s, %s, %s' % (sU, sU, sUf))
    A('s_cmp_eq_u32 %s, %d' % (sW, NS))
    A('s_cbranch_scc1 L_helper')
    C('v1 = x.  v2 = p = off + x ; v3 = e = p - S ; v4 = row ; v5 = cumsel')
    A('v_add_u32 v2, %s, v1' % sOff)
    A('v_subrev_u32 v3, %s, v2' % sS)
    A('v_mov_b32 v4, 0')
    A('v_mov_b32 v5, 0')
    for b in range(1, 8):
        m = MJ[b % 4]
        A('v_cmp_le_i32 %s, s%d, v3' % (m, sCum + b))
        A('v_mov_b32 v6, s%d' % (sCum + b))
        A('s_nop 0')
        A('v_cndmask_b32 v4, v4, %d, %s' % (b, m))
        A('v_cndmask_b32 v5, v5, v6, %s' % m)
    C('excess item: j = S + Q + e - cumsel , code = row ; shared item: j = p, code 8, row 0')
    A('v_sub_u32 v5, v2, v5')
    A('v_add_u32 v5, %s, v5' % sQ)
    A('v_cmp_gt_i32 %s, 0, v3' % MJ[0])
    A('v_subrev_u32 v6, %s, v1' % sFe)
    A('v_cmp_gt_u32 %s, %s, v1' % (MJ[1], sF))
    A('v_cmp_gt_u32 %s, %s, v6' % (MJ[2], sOwn))
    A('v_cndmask_b32 v5, v5, v2, %s' % MJ[0])
    A('v_cndmask_b32 v3, v4, 8, %s' % MJ[0])
    A('v_add_u32 v6, %s, v6' % sS)
    A('v_mov_b32 v2, %s' % sI)
    A('v_cndmask_b32 v5, v6, v5, %s' % MJ[1])
    A('v_cndmask_b32 v3, v2, v3, %s' % MJ[1])
    A('v_cndmask_b32 v4, v2, v4, %s' % MJ[1])
    A('s_or_b64 %s, %s, %s' % (MJ[3], MJ[1], MJ[2]))
    A('v_lshl_add_u32 v4, v4, 7, v5')
    A('v_lshlrev_b32 v4, 2, v4')
    A('buffer_load_dword %s, v4, %s, 0 offen' % (v(vSo), srd(rBT)))
    A('v_lshl_add_u32 %s, v5, 4, v3' % v(vD))
    A('v_mov_b32 v6, 0x40000000')
    A('v_cndmask_b32 %s, v6, %s, %s' % (v(vD), v(vD), MJ[3]))
    A('v_mov_b32 v6, %d' % KV_BYTES)
    A('s_waitcnt vmcnt(1)')
    C('ctx fix-up per lane, zero q where ctx <= 0')
    A('v_cmp_lt_i32 vcc, 0, %s' % v(vCtx))
    A('v_mov_b32 v2, 0x800')
    A('v_min_i32 %s, %s, v2' % (v(vCtx), v(vCtx)))
    A('v_cndmask_b32 %s, v2, %s, vcc' % (v(vCtx), v(vCtx)))
    for r in range(8):
        A('v_cndmask_b32 %s, 0, %s, vcc' % (v(vQ + r), v(vQ + r)))
    A('v_sub_u32 %s, %s, v7' % (v(vCtx), v(vCtx)))
    A('s_waitcnt vmcnt(0)')
    A('v_lshl_add_u32 %s, %s, 17, %s' % (v(vSo), v(vSo), sH256))
    A('v_cndmask_b32 %s, v6, %s, %s' % (v(vSo), v(vSo), MJ[3]))
    A('s_mov_b32 %s, %s' % (sUc, sW))
    A('s_mov_b32 %s, 0' % sK)
    A('v_readlane_b32 %s, %s, 0' % (sOA, v(vSo)))
    A('v_readlane_b32 %s, %s, 1' % (sOB, v(vSo)))
    def loadK():
        for j in range(4):
            so = sOA if j < 2 else sOB
            for hf in range(2):
                r = vK + (j * 2 + hf) * 4
                A('buffer_load_dwordx4 %s, %s, %s, %s offen offset:%d %s' % (vr(r, 4), v(vKo[j & 1]), srd(rK), so, 128 * hf, pol))
    def loadV():
        for i in range(8):
            so = sOA if i < 4 else sOB
            r = vV + i * 4
            A('buffer_load_dwordx4 %s, %s, %s, %s offen %s' % (vr(r, 4), v(vVo[i & 3]), srd(rV), so, pol))
    A('s_cmp_ge_u32 %s, %s' % (sUc, sU))
    A('s_cbranch_scc1 L_nounits')
    A('s_nop 2')
    if ts: stamp(3)
    loadK()
    loadV()
    A('s_barrier')
    lab('L_loop')
    A('s_add_u32 %s, %s, 1' % (sT, sK))
    A('s_add_u32 %s, %s, 2' % (sT2, sK))
    A('s_add_u32 %s, %s, 3' % (sT3, sK))
    A('v_readlane_b32 %s, %s, %s' % (sDA, v(vD), sK))
    A('v_readlane_b32 %s, %s, %s' % (sDB, v(vD), sT))
    A('v_readlane_b32 %s, %s, %s' % (sOA, v(vSo), sT2))
    A('v_readlane_b32 %s, %s, %s' % (sOB, v(vSo), sT3))
    A('s_add_u32 %s, %s, %d' % (sUn, sUc, NS))
    A('s_mov_b32 %s, %s' % (sK, sT2))
    for (d, m, lim) in ((sDA, MA, vLA), (sDB, MB, vLB)):
        A('s_and_b32 %s, %s, 7' % (sT, d))
        A('s_lshl_b32 %s, %s, 1' % (sT, sT))
        A('s_lshl_b64 %s, %s, %s' % (m, BASE, sT))
        A('s_bitcmp1_b32 %s, 3' % d)
        A('s_cselect_b64 %s, -1, %s' % (m, m))
        A('s_and_b32 %s, %s, -16' % (d, d))
        A('v_subrev_u32 %s, %s, %s' % (v(lim), d, v(vCtx)))
        A('v_cndmask_b32 %s, -1, %s, %s' % (v(lim), v(lim), m))
    A('v_cmp_lt_i32 %s, 0, %s' % (MJ[0], v(vLA)))
    A('v_cmp_lt_i32 %s, 8, %s' % (MJ[1], v(vLA)))
    A('v_cmp_lt_i32 %s, 0, %s' % (MJ[2], v(vLB)))
    A('v_cmp_lt_i32 %s, 8, %s' % (MJ[3], v(vLB)))
    A('s_waitcnt vmcnt(8)')
    for hf in range(2):
        for j in range(4):
            d = vr(vS + 4 * j, 4)
            A('v_mfma_f32_16x16x32_bf16 %s, %s, %s, %s' % (d, vr(vK + (j * 2 + hf) * 4, 4), vr(vQ + 4 * hf, 4), '0' if hf == 0 else d))
    A('s_cmp_lt_u32 %s, %s' % (sUn, sU))
    A('s_cbranch_scc1 L_k1')
    A('s_nop 7')
    A('s_branch L_k2')
    lab('L_k1')
    loadK()
    lab('L_k2')
    D = lambda j, r: v(vS + 4 * j + r)
    qp = 'quad_perm:[1,0,3,2] row_mask:0xf bank_mask:0xf'
    for j in range(4):
        A('v_add_f32_dpp %s, %s, %s %s' % (D(j, 0), D(j, 1), D(j, 0), qp))
        A('v_add_f32_dpp %s, %s, %s %s' % (D(j, 3), D(j, 2), D(j, 3), qp))
    for j in range(4):
        A('v_cndmask_b32 %s, %s, %s, %s' % (D(j, 0), D(j, 0), D(j, 3), ODD))
    for j in range(4):
        A('v_cndmask_b32 %s, %s, %s, %s' % (D(j, 0), v(vNinf), D(j, 0), MJ[j]))
    A('v_max3_f32 v1, %s, %s, %s' % (D(0, 0), D(1, 0), D(2, 0)))
    A('v_max3_f32 v1, v1, %s, %s' % (D(3, 0), v(vMr)))
    A('v_mov_b32 v2, v1')
    A('s_nop 1')
    A('v_permlane16_swap_b32 v2, v1')
    A('v_max_f32 v1, v2, v1')
    A('v_mov_b32 v2, v1')
    A('s_nop 1')
    A('v_permlane32_swap_b32 v2, v1')
    A('v_max_f32 %s, v2, v1' % v(vMr))
    A('v_mul_f32 v1, %s, %s' % (sC, v(vMr)))
    A('v_sub_f32 v2, %s, v1' % v(vMc))
    A('v_mov_b32 %s, v1' % v(vMc))
    A('v_exp_f32 v2, v2')
    for j in range(4):
        A('v_fma_f32 %s, %s, %s, -v1' % (D(j, 1), D(j, 0), sC))
    for j in range(4):
        A('v_exp_f32 %s, %s' % (D(j, 1), D(j, 1)))
    for r in range(0, 8, 2):
        A('v_pk_mul_f32 %s, %s, v[2:3] op_sel_hi:[1,0]' % (vr(vO + r, 2), vr(vO + r, 2)))
    for j in range(4):
        A('v_cvt_pk_bf16_f32 %s, %s, %s' % (v(vP + j), D(j, 1), D(j, 1)))
    A('v_add_f32 v4, %s, %s' % (D(0, 1), D(1, 1)))
    A('v_add_f32 v5, %s, %s' % (D(2, 1), D(3, 1)))
    for j in range(4):
        A('v_and_b32 %s, %s, %s' % (v(vP + j), v(vPm), v(vP + j)))
    A('v_add_f32 v4, v4, v5')
    A('v_fma_f32 %s, %s, v2, v4' % (v(vL), v(vL)))
    for r in range(8, 32, 2):
        A('v_pk_mul_f32 %s, %s, v[2:3] op_sel_hi:[1,0]' % (vr(vO + r, 2), vr(vO + r, 2)))
    A('s_cmp_lt_u32 %s, %s' % (sUn, sU))
    A('s_cbranch_scc1 L_v1')
    A('s_waitcnt vmcnt(0)')
    lab('L_v1')
    A('s_waitcnt vmcnt(8)')
    def perms(e):
        tb = vS + 4 * (e % 3)
        w = e >> 1
        for u in range(4):
            A('v_perm_b32 %s, %s, %s, %s' % (v(tb + u), v(vV + (2 * u + 1) * 4 + w), v(vV + (2 * u) * 4 + w), selHi if e & 1 else selLo))
    def pv(e):
        tb = vS + 4 * (e % 3)
        A('v_mfma_f32_16x16x32_bf16 %s, %s, %s, %s' % (vr(vO + 4 * e, 4), vr(tb, 4), vr(vP, 4), vr(vO + 4 * e, 4)))
    perms(0)
    for e in range(1, 8):
        perms(e)
        pv(e - 1)
    A('s_cmp_lt_u32 %s, %s' % (sUn, sU))
    A('s_nop 0')
    pv(7)
    A('s_cbranch_scc0 L_v2')
    loadV()
    lab('L_v2')
    C('foreign dump after the last foreign unit of this wave')
    A('s_cmp_ge_u32 %s, %s' % (sUc, sUf))
    A('s_cbranch_scc1 L_nodump')
    A('s_cmp_lt_u32 %s, %s' % (sUn, sUf))
    A('s_cbranch_scc1 L_nodump')
    A('s_mul_i32 %s, %s, %d' % (sT, sW, DUMP))
    A('v_lshlrev_b32 v1, 4, v0')
    A('v_add_u32 v1, %s, v1' % sT)
    A('v_lshl_add_u32 v2, v0, 3, %s' % sT)
    A('s_nop 4')
    for e in range(8):
        A('ds_write_b128 v1, %s offset:%d' % (vr(vO + 4 * e, 4), FD + 1024 * e))
    A('ds_write_b64 v2, %s offset:%d' % (vr(vMc, 2), FD + 8192))
    A('v_mov_b32 v1, %d' % CNT)
    A('v_mov_b32 v2, 1')
    A('s_waitcnt lgkmcnt(0)')
    A('s_mov_b64 exec, 1')
    A('ds_add_u32 v1, v2')
    A('s_mov_b64 exec, -1')
    for r in range(32):
        A('v_mov_b32 %s, 0' % v(vO + r))
    A('v_mov_b32 %s, 0x%08x' % (v(vMr), SENT_RAW))
    A('v_mov_b32 %s, 0x%08x' % (v(vMc), SENT_MC))
    A('v_mov_b32 %s, 0' % v(vL))
    if ts: stamp(4)
    lab('L_nodump')
    A('s_mov_b32 %s, %s' % (sUc, sUn))
    A('s_cmp_lt_u32 %s, %s' % (sUc, sU))
    A('s_cbranch_scc1 L_loop')
    A('s_branch L_fin')
    lab('L_nounits')
    A('s_barrier')
    lab('L_fin')
    if ts: stamp(5)
    C('own dump: lanes with b == i')
    A('v_and_b32 v1, 1, v0')
    A('v_lshrrev_b32 v2, 4, v0')
    A('s_lshl_b32 %s, %s, 1' % (sT, sW))
    A('v_add_u32 v1, %s, v1' % sT)
    A('v_lshl_add_u32 v1, v1, 2, v2')
    A('v_lshlrev_b32 v2, 3, v1')
    A('v_lshlrev_b32 v1, 7, v1')
    A('s_lshl_b32 %s, %s, 1' % (sT, sI))
    A('s_lshl_b64 exec, %s, %s' % (BASE, sT))
    A('s_nop 3')
    for e in range(8):
        A('ds_write_b128 v1, %s offset:%d' % (vr(vO + 4 * e, 4), OWN + 16 * e))
    A('ds_write_b64 v2, %s offset:%d' % (vr(vMc, 2), OWNML))
    A('s_waitcnt lgkmcnt(0)')
    A('s_barrier')
    if ts:
        A('s_mov_b64 exec, -1')
        A('s_branch L_tsout')
    A('s_endpgm')
    lab('L_helper')
    hA = 52
    hX = 84
    hM, hL = 20, 21
    A('s_waitcnt vmcnt(0) lgkmcnt(0)')
    A('s_barrier')
    mk_srd(rWS, pws, WS_USED)
    mk_srd(rY, pdbg, 256)
    mk_srd(rX, pout, 65536)
    A('v_mov_b32 %s, 0x%08x' % (v(hM), SENT_MC))
    A('v_mov_b32 %s, 0' % v(hL))
    C('acc v52..v67 already zero')
    A('v_lshrrev_b32 v1, 3, v0')
    A('v_bfe_u32 v2, v0, 1, 2')
    A('v_and_b32 v3, 1, v0')
    A('v_lshlrev_b32 v4, 4, v2')
    A('v_lshl_add_u32 v4, v1, 1, v4')
    A('v_lshlrev_b32 v5, 3, v4')
    A('v_lshlrev_b32 v4, 4, v4')
    A('v_lshl_add_u32 v4, v3, 3, v4')
    A('s_min_u32 %s, %s, %d' % (sUf, sUf, NS))
    A('s_cmp_eq_u32 %s, 0' % sUf)
    A('s_cbranch_scc1 L_pub')
    A('v_mov_b32 v6, %d' % CNT)
    lab('L_spin1')
    A('ds_read_b32 v7, v6')
    A('s_waitcnt lgkmcnt(0)')
    A('v_readfirstlane_b32 %s, v7' % sT)
    A('s_nop 1')
    A('s_cmp_ge_u32 %s, %s' % (sT, sUf))
    A('s_cbranch_scc1 L_mrg')
    A('s_sleep 4')
    A('s_branch L_spin1')
    lab('L_mrg')
    if ts: stamp(3)
    lab('L_mrgloop')
    A('ds_read_b128 v[8:11], v5 offset:%d' % (FD + 8192))
    for e in range(8):
        for par in range(2):
            A('ds_read_b64 %s, v4 offset:%d' % (vr(hX + 4 * e + 2 * par, 2), FD + 1024 * e + 16 * par))
    A('v_add_u32 v4, %d, v4' % DUMP)
    A('v_add_u32 v5, %d, v5' % DUMP)
    A('s_waitcnt lgkmcnt(15)')
    A('v_max3_f32 v12, %s, v8, v10' % v(hM))
    A('v_sub_f32 v14, %s, v12' % v(hM))
    A('v_sub_f32 v8, v8, v12')
    A('v_sub_f32 v10, v10, v12')
    A('v_exp_f32 v14, v14')
    A('v_exp_f32 v8, v8')
    A('v_exp_f32 v10, v10')
    A('v_mov_b32 %s, v12' % v(hM))
    A('v_mul_f32 %s, %s, v14' % (v(hL), v(hL)))
    A('v_fmac_f32 %s, v8, v9' % v(hL))
    A('v_fmac_f32 %s, v10, v11' % v(hL))
    for r in range(0, 16, 2):
        A('v_pk_mul_f32 %s, %s, v[14:15] op_sel_hi:[1,0]' % (vr(hA + r, 2), vr(hA + r, 2)))
    A('s_waitcnt lgkmcnt(0)')
    for e in range(8):
        for rr in range(2):
            A('v_fmac_f32 %s, v8, %s' % (v(hA + 8 * rr + e), v(hX + 4 * e + rr)))
            A('v_fmac_f32 %s, v10, %s' % (v(hA + 8 * rr + e), v(hX + 4 * e + 2 + rr)))
    A('s_sub_u32 %s, %s, 1' % (sUf, sUf))
    A('s_cmp_lg_u32 %s, 0' % sUf)
    A('s_cbranch_scc1 L_mrgloop')
    lab('L_pub')
    A('s_nop 1')
    A('v_add_f32_dpp %s, %s, %s quad_perm:[2,3,0,1] row_mask:0xf bank_mask:0xf' % (v(hL), v(hL), v(hL)))
    A('s_nop 1')
    A('v_add_f32_dpp %s, %s, %s row_half_mirror row_mask:0xf bank_mask:0xf' % (v(hL), v(hL), v(hL)))
    A('v_mul_u32_u24 v4, %d, v1' % (8 * ROW))
    A('v_and_b32 v5, 7, v0')
    A('v_lshl_add_u32 v5, v5, 6, v4')
    A('s_lshl_b32 %s, %s, 6' % (sT, sH))
    A('s_add_u32 %s, %s, %s' % (sT2, sT, sI))
    A('s_mul_i32 %s, %s, %d' % (sT2, sT2, ROW))
    for q in range(4):
        A('buffer_store_dwordx4 %s, v5, %s, %s offen offset:%d sc1' % (vr(hA + 4 * q, 4), srd(rWS), sT2, 16 * q))
    A('buffer_store_dwordx2 %s, v4, %s, %s offen offset:512 sc1' % (vr(hM, 2), srd(rWS), sT2))
    A('s_lshl_b32 %s, %s, 2' % (sT3, sH))
    A('v_mov_b32 v6, %s' % sT3)
    A('v_mov_b32 v7, 1')
    A('s_waitcnt vmcnt(0)')
    A('s_mov_b64 exec, 1')
    A('buffer_atomic_add v7, v6, %s, 0 offen sc1' % srd(rY))
    A('s_mov_b64 exec, -1')
    if ts: stamp(4)
    C('wait for all eight producers of this head (bounded)')
    A('s_mov_b32 %s, 0' % sK)
    lab('L_spin2')
    A('buffer_load_dword v7, v6, %s, 0 offen sc1' % srd(rY))
    A('s_waitcnt vmcnt(0)')
    A('v_readfirstlane_b32 %s, v7' % sT3)
    A('s_add_u32 %s, %s, 1' % (sK, sK))
    A('s_cmp_ge_u32 %s, 8' % sT3)
    A('s_cbranch_scc1 L_got')
    A('s_cmp_ge_u32 %s, 0x8000' % sK)
    A('s_cbranch_scc1 L_got')
    A('s_sleep 8')
    A('s_branch L_spin2')
    lab('L_got')
    if ts: stamp(5)
    C('rows (h, i, p) for p = 0..7 : base (h*64 + i*8)*ROW')
    A('s_lshl_b32 %s, %s, 3' % (sT2, sI))
    A('s_add_u32 %s, %s, %s' % (sT2, sT2, sT))
    A('s_mul_i32 %s, %s, %d' % (sT2, sT2, ROW))
    A('v_lshlrev_b32 v4, 3, v0')
    A('v_mov_b32 v5, 0')
    A('v_add_u32 v6, %d, v4' % (4 * ROW))
    A('v_mov_b32 v7, %d' % (4 * ROW))
    fO = 84; fM = 100
    for p in range(8):
        A('buffer_load_dwordx2 %s, %s, %s, %s offen offset:%d sc1' % (vr(fM + 2 * p, 2), 'v5' if p < 4 else 'v7', srd(rWS), sT2, (p & 3) * ROW + 512))
    for p in range(8):
        A('buffer_load_dwordx2 %s, %s, %s, %s offen offset:%d sc1' % (vr(fO + 2 * p, 2), 'v4' if p < 4 else 'v6', srd(rWS), sT2, (p & 3) * ROW))
    C('LDS read addresses for the own dumps')
    A('v_lshrrev_b32 v1, 4, v0')
    A('v_and_b32 v2, 3, v0')
    A('v_bfe_u32 v3, v0, 2, 2')
    A('v_lshlrev_b32 v1, 5, v1')
    A('v_lshl_add_u32 v1, v2, 3, v1')
    A('v_add_u32 v1, v1, v3')
    A('v_lshlrev_b32 v1, 2, v1')
    A('v_add_u32 v1, %d, v1' % OWN)
    A('v_min_u32 v2, 55, v0')
    A('v_lshlrev_b32 v2, 3, v2')
    A('s_waitcnt vmcnt(8)')
    M = lambda p: v(fM + 2 * p)
    Lf = lambda p: v(fM + 2 * p + 1)
    A('v_max3_f32 v8, %s, %s, %s' % (M(0), M(1), M(2)))
    A('v_max3_f32 v8, v8, %s, %s' % (M(3), M(4)))
    A('v_max3_f32 v8, v8, %s, %s' % (M(5), M(6)))
    A('v_max_f32 v8, v8, %s' % M(7))
    for p in range(8):
        A('v_sub_f32 %s, %s, v8' % (M(p), M(p)))
    for p in range(8):
        A('v_exp_f32 %s, %s' % (M(p), M(p)))
    A('v_mov_b32 v9, 0')
    A('v_mov_b32 v10, 0')
    A('v_mov_b32 v11, 0')
    A('s_waitcnt vmcnt(0)')
    for p in range(8):
        A('v_fmac_f32 v9, %s, %s' % (M(p), Lf(p)))
        A('v_fmac_f32 v10, %s, %s' % (M(p), v(fO + 2 * p)))
        A('v_fmac_f32 v11, %s, %s' % (M(p), v(fO + 2 * p + 1)))
    A('v_cmp_gt_u32 %s, 56, v0' % MA)
    A('s_lshl_b32 %s, %s, 5' % (sT, sI))
    A('s_add_u32 %s, %s, %s' % (sT, sT, sH))
    A('s_lshl_b32 %s, %s, 8' % (sT, sT))
    A('v_lshlrev_b32 v3, 2, v0')
    if ts: stamp(6)
    A('s_barrier')
    if ts: stamp(7)
    A('ds_read_b64 v[12:13], v2 offset:%d' % OWNML)
    oX = 52
    for t in range(14):
        if t and t % 2 == 0:
            A('v_add_u32 v1, 1024, v1')
        A('ds_read2_b32 %s, v1 offset0:%d offset1:%d' % (vr(oX + 2 * t, 2), 128 * (t & 1), 128 * (t & 1) + 4))
    A('s_waitcnt lgkmcnt(14)')
    A('v_max_f32 v14, v12, v8')
    for ctl in ('quad_perm:[1,0,3,2]', 'quad_perm:[2,3,0,1]', 'row_half_mirror', 'row_mirror'):
        A('s_nop 1')
        A('v_max_f32_dpp v14, v14, v14 %s row_mask:0xf bank_mask:0xf' % ctl)
    for sw in ('16', '32'):
        A('v_mov_b32 v15, v14')
        A('s_nop 1')
        A('v_permlane%s_swap_b32 v15, v14' % sw)
        A('v_max_f32 v14, v15, v14')
    A('v_sub_f32 v12, v12, v14')
    A('v_sub_f32 v8, v8, v14')
    A('v_exp_f32 v12, v12')
    A('v_exp_f32 v8, v8')
    A('s_nop 0')
    A('v_mul_f32 v13, v12, v13')
    A('v_cndmask_b32 v13, 0, v13, %s' % MA)
    A('v_mul_f32 v10, v8, v10')
    A('v_mul_f32 v11, v8, v11')
    for t in range(14):
        A('v_readlane_b32 s%d, v12, %d' % (44 + t, 4 * t))
    for ctl in ('quad_perm:[1,0,3,2]', 'quad_perm:[2,3,0,1]', 'row_half_mirror', 'row_mirror'):
        A('v_add_f32_dpp v13, v13, v13 %s row_mask:0xf bank_mask:0xf' % ctl)
        A('s_nop 1')
    for sw in ('16', '32'):
        A('v_mov_b32 v15, v13')
        A('s_nop 1')
        A('v_permlane%s_swap_b32 v15, v13' % sw)
        A('v_add_f32 v13, v15, v13')
    A('v_fmac_f32 v13, v8, v9')
    A('v_rcp_f32 v13, v13')
    A('s_waitcnt lgkmcnt(0)')
    for t in range(14):
        A('v_fmac_f32 v10, s%d, %s' % (44 + t, v(oX + 2 * t)))
        A('v_fmac_f32 v11, s%d, %s' % (44 + t, v(oX + 2 * t + 1)))
    A('v_mul_f32 v10, v10, v13')
    A('v_mul_f32 v11, v11, v13')
    A('v_cvt_pk_bf16_f32 v10, v10, v11')
    A('buffer_store_dword v10, v3, %s, %s offen' % (srd(rX), sT))
    if ts:
        stamp(8)
        lab('L_tsout')
        A('s_waitcnt vmcnt(0)')
        stamp(9)
        A('s_mov_b32 s%d, s%d' % (rWS, pws))
        A('s_and_b32 s%d, s%d, 0xffff' % (rWS + 1, pws + 1))
        A('s_mov_b32 s%d, 0x2000000' % (rWS + 2))
        A('s_mov_b32 s%d, 0x20000' % (rWS + 3))
        A('s_lshl_b32 %s, s2, 3' % sT)
        A('s_add_u32 %s, %s, %s' % (sT, sT, sW))
        A('s_lshl_b32 %s, %s, 8' % (sT, sT))
        A('s_add_u32 %s, %s, 0x1000000' % (sT, sT))
        A('v_lshlrev_b32 v1, 2, v0')
        A('buffer_store_dword v148, v1, %s, %s offen' % (srd(rWS), sT))
    lab('L_end')
    A('s_endpgm')
    nv = NV + (4 if ts else 0)
    hdr = header if header is not None else ''
    out = hdr + '; @launch grid=(256,1,1) block=(512,1,1) lds=%d\n' % LDS
    out += '.amdgcn_target "amdgcn-amd-amdhsa--gfx950"\n.text\n.globl %s_kernel\n.p2align 8\n.type %s_kernel,@function\n' % (NAME, NAME)
    out += '\n'.join(L) + '\n'
    out += '''.section .rodata,"a"
.p2align 6
.amdhsa_kernel %s_kernel
  .amdhsa_next_free_vgpr %d
  .amdhsa_next_free_sgpr 102
  .amdhsa_accum_offset %d
  .amdhsa_group_segment_fixed_size 0
  .amdhsa_kernarg_size 64
  .amdhsa_user_sgpr_count 2
  .amdhsa_user_sgpr_kernarg_segment_ptr 1
  .amdhsa_system_sgpr_workgroup_id_x 1
.end_amdhsa_kernel
''' % (NAME, nv, (nv + 3) // 4 * 4)
    return out

def header():
    ref = open('cdna_kernels/%s.s.ref' % NAME).read().splitlines()
    h = []
    for l in ref:
        if l.startswith('; @launch'): break
        h.append(l)
    return '\n'.join(h) + '\n'

if __name__ == '__main__':
    import argparse
    ap = argparse.ArgumentParser()
    ap.add_argument('-o', default='cdna_kernels/%s.s' % NAME)
    ap.add_argument('--pol', default='nt')
    ap.add_argument('--ts', action='store_true')
    a = ap.parse_args()
    pol = '' if a.pol == 'def' else a.pol.replace('_', ' ')
    open(a.o, 'w').write(gen(pol, a.ts, header()))
```

```python
import sys, struct
import numpy as np

NAME = 'standalone__paged_block_table_kv_radixattention__sampling'
KV_BYTES = 75497472
NS = 4
ESTR = 276 * 4
DUMP = 8 * ESTR + 512
ITEMS = 0
OWNML = 2048
CNT = OWNML + 64
MLS = CNT + 32
OWN = 2560
FD = OWN + 8 * 576
LDS = FD + NS * DUMP
WS_P = 32 * 8 * 8 * 512
WS_C = WS_P + 32 * 8 * 128
WS_USED = WS_C + 32 * 128
F_DUMP, F_LAST, F_TRIG = 16, 17, 18

DOC = '''; ---------------------------------------------------------------------------------------------------
; ---------------------------------------------------------------------------------------------------
'''

def f32bits(x):
    return struct.unpack('<I', struct.pack('<f', x))[0]
C_SCALE = f32bits(128 ** -0.5 * 1.4426950408889634)
SENT_RAW = f32bits(-1e30)
SENT_MC = f32bits(float(np.float32(-1e30) * np.float32(128 ** -0.5 * 1.4426950408889634)))

def plan(bt, ctx):
    nb = [(min(c, 2048) + 15) // 16 if c > 0 else 128 for c in ctx]
    S = 0
    while S < max(nb) and all(bt[b][S] == bt[0][S] for b in range(8)): S += 1
    n = [max(x - S, 0) for x in nb]
    Q = (S + sum(n) + 7) >> 3
    own = [min(x, Q) for x in n]
    take = [Q - x for x in own]
    pool = [bt[0][j] for j in range(S)]
    for b in range(8): pool += [bt[b][S + y] for y in range(own[b], n[b])]
    key = [take[b] * 8 - b for b in range(8)]
    out = []
    for i in range(8):
        off = sum(take[b] for b in range(8) if key[b] > key[i])
        out.append((pool[off:off + take[i]], [bt[i][S + y] for y in range(own[i])]))
    return out

def usual_table():
    bt = [list(range(64)) + [64 + 64 * b + j for j in range(64)] for b in range(8)]
    ctx = [2048 - ((b + 1) * 2654435761) % 512 for b in range(8)]
    p = [f + o + [576] * 8 for f, o in plan(bt, ctx)]
    return [p[i][x] << 17 for i in range(8) for x in range(2 * NS)]

def gen(pol='nt', ts=0, header='', TRIGREM=2, dbg='', W=6, H=6, PERM=0x76245103, SLEEP=16, TPOS=0, DFIRST=False, W2=0, WM=0xff, XM=0xf0):
    L = []
    def A(s): L.append('    ' + s)
    def lab(s): L.append(s + ':')
    def C(s): L.append('    ; ' + s)
    def v(i): return 'v%d' % i
    def vr(i, n): return 'v[%d:%d]' % (i, i + n - 1)
    def srd(r): return 's[%d:%d]' % (r, r + 3)
    def srd_tail(r, nbytes):
        A('s_mov_b32 s%d, %d' % (r + 2, nbytes)); A('s_mov_b32 s%d, 0x20000' % (r + 3))
    def srd_base(r, p):
        A('s_mov_b32 s%d, s%d' % (r, p)); A('s_and_b32 s%d, s%d, 0xffff' % (r + 1, p + 1))
    def mk_srd(r, p, nbytes):
        srd_base(r, p); srd_tail(r, nbytes)
    LD = 'cas' not in dbg.split(',')
    V0N = 1 if 'v01' in dbg else 2
    DPP = 'row_mask:0xf bank_mask:0xf'
    sW = 's3'
    pq, pk, pv, pbt, pctx, pout, pdbg, pws = 4, 6, 8, 10, 12, 14, 16, 18
    rK, rV, rBT, rX, rWS, rY = 20, 24, 28, 32, 36, 40
    sN, sCum = 44, 52
    sFl, sCA, sCB = 's44', 's45', 's48'
    OWNX = 's[50:51]'
    sH, sI, sH256, sS, sQ, sOff, sF, sK, sOwn, sU, sUf, sPn = ['s%d' % i for i in range(60, 72)]
    EX = 's[72:73]'; ODD = 's[74:75]'; BASE = 's[76:77]'
    selLo, selHi, sC = 's78', 's79', 's80'
    sXc, sCen = 's78', 's79'
    sOA, sOB, sDA, sDB, sT = 's81', 's82', 's83', 's84', 's85'
    sTag = sDB
    MA, MB = 's[86:87]', 's[88:89]'
    MJ = ['s[90:91]', 's[92:93]', 's[94:95]', 's[96:97]']
    sT2, sT3 = 's98', 's99'
    vKo = [8, 9]; vVo = [10, 11, 12, 13]
    vCtx, vNinf, vPm, vMr, vMc, vA1, vSo, vD, vLA, vLB = range(14, 24)
    vP, vQ, vS, vO, vK, vV, vL, vOne, vA2 = 24, 28, 36, 52, 84, 116, 148, 152, 156
    NV = 157
    vTS = 158
    def stamp(idx):
        if ts == 1 or (ts and idx == 9):
            A('s_memrealtime s[100:101]')
            A('s_waitcnt lgkmcnt(0)')
            A('v_writelane_b32 %s, s100, %d' % (v(vTS), idx))
    def stampk(off):
        if ts == 1:
            A('s_memrealtime s[100:101]')
            A('s_lshl_b32 m0, %s, 1' % sK)
            A('s_add_u32 m0, m0, %d' % (16 - 4 + off))
            A('s_waitcnt lgkmcnt(0)')
            A('v_writelane_b32 %s, s100, m0' % v(vTS))
    nw = [0]
    def window(k):
        if W2 and (WM >> k) & 1:
            nw[0] += 1
            A('s_cbranch_vccnz L_w%d' % nw[0])
            A('s_waitcnt vmcnt(%d)' % (W2 - 1))
            lab('L_w%d' % nw[0])
        A('s_waitcnt vmcnt(%d)' % (W - 1))
    def loadK(lo=0, hi=8, win=True):
        for n in range(lo, hi):
            j, hf = n >> 1, n & 1
            if win: window(n)
            A('buffer_load_dwordx4 %s, %s, %s, %s offen offset:%d %s' % (vr(vK + n * 4, 4), v(vKo[j & 1]), srd(rK), sOA if j < 2 else sOB, 128 * hf, pol))
    def loadV(lo=0, hi=8, cur=False):
        for i in range(lo, hi):
            so = (sCA if cur else sOA) if i < 4 else (sCB if cur else sOB)
            window(i)
            A('buffer_load_dwordx4 %s, %s, %s, %s offen %s' % (vr(vV + i * 4, 4), v(vVo[i & 3]), srd(rV), so, pol))
    def reset_acc():
        for r in range(32):
            A('v_mov_b32 %s, 0' % v(vO + r))
        for r in range(4):
            A('v_mov_b32 %s, 0' % v(vL + r))
        A('v_mov_b32 %s, 0x%08x' % (v(vMr), SENT_RAW))
        A('v_mov_b32 %s, 0x%08x' % (v(vMc), SENT_MC))

    lab(NAME + '_kernel')
    A('s_cmp_ge_u32 s2, 256')
    A('s_cbranch_scc1 L_end')
    A('s_load_dwordx16 s[4:19], s[0:1], 0')
    C('first round guessed from the usual table layout; checked against the real list below')
    A('s_getpc_b64 s[46:47]')
    lab('L_pc')
    A('s_and_b32 %s, s2, 56' % sT)
    A('s_lshl2_add_u32 %s, %s, L_guess-L_pc' % (sT, sT))
    A('s_load_dwordx8 s[52:59], s[46:47], %s' % sT)
    if ts:
        A('v_mov_b32 %s, 0' % v(vTS))
        A('s_memrealtime s[100:101]')
    A('v_lshrrev_b32 v1, 6, v0')
    A('v_and_b32 v0, 63, v0')
    A('v_readfirstlane_b32 %s, v1' % sW)
    C('owner i = (wg >> 3) & 7 of head h = perm(wg & 7) + 8 (wg >> 6): the eight owners of a head are neighbours')
    A('s_and_b32 %s, s2, 7' % sH)
    A('s_lshl_b32 %s, %s, 2' % (sH, sH))
    A('s_lshr_b32 %s, 0x%08x, %s' % (sH, PERM, sH))
    A('s_and_b32 %s, %s, 7' % (sH, sH))
    A('s_lshr_b32 %s, s2, 6' % sT)
    if 'crev' in dbg: A('s_xor_b32 %s, %s, 3' % (sT, sT))
    A('s_lshl3_add_u32 %s, %s, %s' % (sH, sT, sH))
    A('s_bfe_u32 %s, s2, 0x30003' % sI)
    A('s_lshl_b32 %s, %s, 8' % (sH256, sH))
    A('s_cmp_eq_u32 %s, 0' % sW)
    A('s_cbranch_scc1 L_helper')
    A('s_sub_u32 %s, %s, 1' % (sW, sW))
    A('s_mov_b32 m0, %s' % sW)
    C('lane = 16 G + 2 t + par.  K / Q: row t, bytes (2 G + par) 16 ; V: row 2 G, bytes (lane & 15) 16')
    A('v_lshrrev_b32 v2, 4, v0')
    A('v_bfe_u32 v4, v0, 1, 3')
    A('v_and_b32 v5, 1, v0')
    A('v_lshl_add_u32 %s, v4, 13, %s' % (v(vKo[0]), sH256))
    A('v_lshl_add_u32 %s, v2, 5, %s' % (v(vKo[0]), v(vKo[0])))
    A('v_lshl_add_u32 %s, v5, 4, %s' % (v(vKo[0]), v(vKo[0])))
    A('v_add_u32 %s, 0x10000, %s' % (v(vKo[1]), v(vKo[0])))
    srd_tail(rK, KV_BYTES)
    A('s_waitcnt lgkmcnt(0)')
    if ts: A('v_writelane_b32 %s, s100, 0' % v(vTS))
    A('s_movrels_b32 %s, s52' % sOA)
    A('s_movrels_b32 %s, s56' % sOB)
    srd_base(rK, pk)
    stamp(3)
    if 'probeK' in dbg:
        A('buffer_load_dword v36, off, %s, %s nt' % (srd(rK), sOA))
        A('s_waitcnt vmcnt(0)'); stamp(6)
        mk_srd(rV, pv, KV_BYTES)
        A('buffer_load_dword v36, off, %s, %s nt' % (srd(rV), sOA))
        A('s_waitcnt vmcnt(0)'); stamp(7)
        loadK(win=False)
        A('s_waitcnt vmcnt(7)'); stamp(8)
        A('s_waitcnt vmcnt(4)'); stamp(10)
        A('s_waitcnt vmcnt(0)'); stamp(11)
    if 'probe1' in dbg:
        loadK(0, 1, win=False)
        A('s_waitcnt vmcnt(0)'); stamp(6)
        loadK(1, 2, win=False)
        A('s_waitcnt vmcnt(0)'); stamp(7)
        loadK(2, 8, win=False)
        A('s_waitcnt vmcnt(5)'); stamp(8)
        A('s_waitcnt vmcnt(3)'); stamp(10)
        A('s_waitcnt vmcnt(0)'); stamp(11)
    if 'vt1' in dbg:
        srd_base(rV, pv)
        loadK(0, 1, win=False)
        A('buffer_load_dword v36, off, %s, %s' % (srd(rV), sOA))
        loadK(1, 8, win=False)
    else:
        loadK(win=False)
    mk_srd(rX, pq, 65536); mk_srd(rY, pctx, 32); mk_srd(rV, pv, KV_BYTES)
    A('v_and_b32 v3, 15, v0')
    A('v_lshl_add_u32 %s, v2, 14, %s' % (v(vVo[0]), sH256))
    A('v_lshl_add_u32 %s, v3, 4, %s' % (v(vVo[0]), v(vVo[0])))
    A('v_add_u32 %s, 0x2000, %s' % (v(vVo[1]), v(vVo[0])))
    A('v_add_u32 %s, 0x10000, %s' % (v(vVo[2]), v(vVo[0])))
    A('v_add_u32 %s, 0x12000, %s' % (v(vVo[3]), v(vVo[0])))
    A('v_lshlrev_b32 v6, 2, v4')
    if 'vt2' in dbg:
        A('buffer_load_dword v36, off, %s, %s' % (srd(rV), sOA))
    A('buffer_load_dwordx4 %s, %s, %s, 0 offen' % (vr(vQ, 4), v(vKo[0]), srd(rX)))
    A('buffer_load_dwordx4 %s, %s, %s, 0 offen offset:128' % (vr(vQ + 4, 4), v(vKo[0]), srd(rX)))
    A('buffer_load_dword %s, v6, %s, 0 offen' % (v(vCtx), srd(rY)))
    A('s_mov_b32 s74, 0xaaaaaaaa'); A('s_mov_b32 s75, 0xaaaaaaaa')
    A('s_mov_b32 s76, 0x00030003'); A('s_mov_b32 s77, 0x00030003')
    A('s_mov_b32 %s, 0x05040100' % selLo); A('s_mov_b32 %s, 0x07060302' % selHi)
    A('s_mov_b32 %s, 0x%08x' % (sC, C_SCALE))
    A('v_mov_b32 %s, 0xff800000' % v(vNinf))
    A('v_mov_b32 v7, 0xffff0000')
    A('v_mov_b32 %s, 0xffff' % v(vPm))
    A('v_cndmask_b32 %s, %s, v7, %s' % (v(vPm), v(vPm), ODD))
    A('v_lshl_add_u32 v7, v2, 1, v5')
    for r in range(4):
        A('v_mov_b32 %s, 0x3f803f80' % v(vOne + r))
    C('addresses of the own dump: entry 2 w + par')
    A('s_lshl_b32 %s, %s, 1' % (sT, sW))
    A('v_add_u32 v3, %s, v5' % sT)
    A('v_lshlrev_b32 %s, 3, v3' % v(vA2))
    A('v_add_u32 %s, %d, %s' % (v(vA2), OWNML, v(vA2)))
    A('v_lshl_add_u32 v3, v3, 2, v2')
    A('v_mul_u32_u24 %s, 144, v3' % v(vA1))
    A('v_add_u32 %s, %d, %s' % (v(vA1), OWN, v(vA1)))
    A('s_lshl_b32 %s, %s, 1' % (sT2, sI))
    A('s_lshl_b64 %s, %s, %s' % (OWNX, BASE, sT2))
    C('item table address of lane k: slot 2 w + 8 (k >> 1) + (k & 1)')
    A('v_lshrrev_b32 v1, 1, v0')
    A('v_mad_u32_u24 v1, v1, %d, %s' % (2 * NS, sT))
    A('v_add_lshl_u32 v1, v1, v5, 3')
    reset_acc()
    def setv():
        if W2:
            A('s_and_b32 %s, s2, 7' % sT3)
            A('s_bitcmp1_b32 0x%x, %s' % (XM, sT3))
            A('s_cselect_b64 vcc, -1, 0')
    setv()
    A('s_mov_b32 %s, 0' % sK)
    if 'v0' in dbg:
        for i in range(V0N):
            A('buffer_load_dwordx4 %s, %s, %s, %s offen %s' % (vr(vV + i * 4, 4), v(vVo[i & 3]), srd(rV), sOA if i < 4 else sOB, pol))
        loadV(V0N, H)
    else:
        loadV(0, H)
    A('s_barrier')
    stamp(1)
    A('ds_read_b64 %s, v1 offset:%d' % (vr(vSo, 2), ITEMS))
    A('s_waitcnt vmcnt(%d)' % H)
    C('ctx fix-up per lane; ctx <= 0 masks every key in the reference, i.e. uniform weights: q = 0, ctx = 2048')
    A('v_cmp_lt_i32 vcc, 0, %s' % v(vCtx))
    A('v_mov_b32 v2, 0x800')
    A('v_min_i32 %s, %s, v2' % (v(vCtx), v(vCtx)))
    A('v_cndmask_b32 %s, v2, %s, vcc' % (v(vCtx), v(vCtx)))
    for r in range(8):
        A('v_cndmask_b32 %s, 0, %s, vcc' % (v(vQ + r), v(vQ + r)))
    A('v_sub_u32 %s, %s, v7' % (v(vCtx), v(vCtx)))
    setv()
    A('s_waitcnt lgkmcnt(0)')
    A('v_readlane_b32 %s, %s, 0' % (sT, v(vSo)))
    A('v_readlane_b32 %s, %s, 1' % (sT2, v(vSo)))
    A('s_nop 1')
    A('s_cmp_lg_u32 %s, %s' % (sT, sOA))
    A('s_cbranch_scc1 L_redo')
    A('s_cmp_eq_u32 %s, %s' % (sT2, sOB))
    A('s_cbranch_scc1 L_loop')
    lab('L_redo')
    A('s_waitcnt vmcnt(0)')
    A('s_mov_b32 %s, %s' % (sOA, sT))
    A('s_mov_b32 %s, %s' % (sOB, sT2))
    loadK(win=False)
    loadV(0, H)
    lab('L_loop')
    A('s_add_u32 %s, %s, 1' % (sT, sK))
    A('s_add_u32 %s, %s, 2' % (sT2, sK))
    A('s_add_u32 %s, %s, 3' % (sT3, sK))
    A('s_mov_b32 %s, %s' % (sCA, sOA))
    A('s_mov_b32 %s, %s' % (sCB, sOB))
    A('v_readlane_b32 %s, %s, %s' % (sDA, v(vD), sK))
    A('v_readlane_b32 %s, %s, %s' % (sDB, v(vD), sT))
    A('v_readlane_b32 %s, %s, %s' % (sOA, v(vSo), sT2))
    A('v_readlane_b32 %s, %s, %s' % (sOB, v(vSo), sT3))
    A('s_mov_b32 %s, %s' % (sK, sT2))
    A('s_mov_b32 %s, %s' % (sFl, sDA))
    def trigger():
        C('tell the helper that the local stream is close to its end')
        A('s_bitcmp0_b32 %s, %d' % (sFl, F_TRIG))
        A('s_cbranch_scc1 L_nt')
        A('v_mov_b32 v1, %d' % CNT)
        A('v_mov_b32 v4, 1')
        A('ds_write_b32 v1, v4 offset:4')
        lab('L_nt')
    if TPOS == 0: trigger()
    C('validity of the 4 x 8 keys per column: member of the block and position < ctx')
    for (d, m, lim) in ((sDA, MA, vLA), (sDB, MB, vLB)):
        A('s_and_b32 %s, %s, 7' % (sT, d))
        A('s_lshl_b32 %s, %s, 1' % (sT, sT))
        A('s_lshl_b64 %s, %s, %s' % (m, BASE, sT))
        A('s_bitcmp1_b32 %s, 3' % d)
        A('s_cselect_b64 %s, -1, %s' % (m, m))
        A('s_and_b32 %s, %s, 0x400007f0' % (d, d))
        A('v_subrev_u32 %s, %s, %s' % (v(lim), d, v(vCtx)))
        A('v_cndmask_b32 %s, -1, %s, %s' % (v(lim), v(lim), m))
    A('v_cmp_lt_i32 %s, 0, %s' % (MJ[0], v(vLA)))
    A('v_cmp_lt_i32 %s, 8, %s' % (MJ[1], v(vLA)))
    A('v_cmp_lt_i32 %s, 0, %s' % (MJ[2], v(vLB)))
    A('v_cmp_lt_i32 %s, 8, %s' % (MJ[3], v(vLB)))
    stampk(0)
    A('s_waitcnt vmcnt(%d)' % H)
    stampk(1)
    for hf in range(2):
        for j in range(4):
            d = vr(vS + 4 * j, 4)
            A('v_mfma_f32_16x16x32_bf16 %s, %s, %s, %s' % (d, vr(vK + (j * 2 + hf) * 4, 4), vr(vQ + 4 * hf, 4), '0' if hf == 0 else d))
    tail = list(range(H, 8))
    def vtail(last=False):
        if tail:
            i = tail.pop(0); loadV(i, i + 1, cur=True)
        while last and tail:
            i = tail.pop(0); loadV(i, i + 1, cur=True)
    vtail()
    A('s_nop 4')
    D = lambda j, r: v(vS + 4 * j + r)
    qp = 'quad_perm:[1,0,3,2] ' + DPP
    C('rows and columns both carry the chunk parity: add the two diagonal halves; even lane key 2 G, odd lane key 2 G + 1')
    for j in range(4):
        A('v_add_f32_dpp %s, %s, %s %s' % (D(j, 0), D(j, 1), D(j, 0), qp))
        A('v_add_f32_dpp %s, %s, %s %s' % (D(j, 3), D(j, 2), D(j, 3), qp))
    for j in range(4):
        A('v_cndmask_b32 %s, %s, %s, %s' % (D(j, 0), D(j, 0), D(j, 3), ODD))
    for j in range(4):
        A('v_cndmask_b32 %s, %s, %s, %s' % (D(j, 0), v(vNinf), D(j, 0), MJ[j]))
    C('running maximum of the column (over the four lane groups)')
    A('v_max3_f32 v1, %s, %s, %s' % (D(0, 0), D(1, 0), D(2, 0)))
    A('v_max3_f32 v1, v1, %s, %s' % (D(3, 0), v(vMr)))
    A('v_mov_b32 v2, v1')
    A('s_nop 1')
    A('v_permlane16_swap_b32 v2, v1')
    A('v_max_f32 v1, v2, v1')
    A('v_mov_b32 v2, v1')
    A('s_nop 1')
    A('v_permlane32_swap_b32 v2, v1')
    A('v_max_f32 %s, v2, v1' % v(vMr))
    vtail()
    A('v_mul_f32 v1, %s, %s' % (sC, v(vMr)))
    A('v_sub_f32 v2, %s, v1' % v(vMc))
    A('v_mov_b32 %s, v1' % v(vMc))
    A('v_exp_f32 v2, v2')
    for j in range(4):
        A('v_fma_f32 %s, %s, %s, -v1' % (D(j, 1), D(j, 0), sC))
    for j in range(4):
        A('v_exp_f32 %s, %s' % (D(j, 1), D(j, 1)))
    for r in range(0, 8, 2):
        A('v_pk_mul_f32 %s, %s, v[2:3] op_sel_hi:[1,0]' % (vr(vO + r, 2), vr(vO + r, 2)))
    for j in range(4):
        A('v_cvt_pk_bf16_f32 %s, %s, %s' % (v(vP + j), D(j, 1), D(j, 1)))
    A('v_mul_f32 %s, %s, v2' % (v(vL), v(vL)))
    for j in range(4):
        A('v_and_b32 %s, %s, %s' % (v(vP + j), v(vPm), v(vP + j)))
    vtail()
    for r in range(8, 32, 2):
        A('v_pk_mul_f32 %s, %s, v[2:3] op_sel_hi:[1,0]' % (vr(vO + r, 2), vr(vO + r, 2)))
    C('denominator: all-ones rows times P')
    A('v_mfma_f32_16x16x32_bf16 %s, %s, %s, %s' % (vr(vL, 4), vr(vOne, 4), vr(vP, 4), vr(vL, 4)))
    vtail(True)
    if TPOS == 1: trigger()
    stampk(2)
    A('s_bitcmp0_b32 %s, %d' % (sFl, F_LAST))
    A('s_cbranch_scc1 L_k1')
    A('s_waitcnt vmcnt(0)')
    A('s_branch L_k2')
    lab('L_k1')
    loadK(0, H)
    A('s_waitcnt vmcnt(%d)' % H)
    lab('L_k2')
    if TPOS == 2: trigger()
    stampk(3)
    if ts == 1 or TPOS == 2: A('s_bitcmp0_b32 %s, %d' % (sFl, F_LAST))
    def perms(e):
        tb = vS + 4 * (e % 3)
        w = e >> 1
        for u in range(4):
            A('v_perm_b32 %s, %s, %s, %s' % (v(tb + u), v(vV + (2 * u + 1) * 4 + w), v(vV + (2 * u) * 4 + w), selHi if e & 1 else selLo))
    def pv_(e):
        tb = vS + 4 * (e % 3)
        A('v_mfma_f32_16x16x32_bf16 %s, %s, %s, %s' % (vr(vO + 4 * e, 4), vr(tb, 4), vr(vP, 4), vr(vO + 4 * e, 4)))
    ktail = list(range(H, 8))
    def kt():
        if ktail:
            n = ktail.pop(0)
            A('s_cbranch_scc0 L_kt%d' % n)
            loadK(n, n + 1)
            lab('L_kt%d' % n)
    C('V^T fragments by an in-lane 8 x 8 transpose; O^T tile e holds d = 32 G + 8 r + e')
    perms(0)
    for e in range(1, 8):
        perms(e)
        pv_(e - 1)
        if e in (1, 4): kt()
    A('s_nop 1')
    pv_(7)
    def next_loads():
        A('s_cbranch_scc0 L_v2')
        if ktail: loadK(ktail[0], 8)
        loadV(0, H)
        lab('L_v2')
    if not DFIRST: next_loads()
    C('hand the accumulators to the helper after the last foreign unit of this wave')
    A('s_bitcmp0_b32 %s, %d' % (sFl, F_DUMP))
    A('s_cbranch_scc1 L_nodump')
    A('s_mul_i32 %s, %s, %d' % (sT, sW, DUMP))
    A('v_lshrrev_b32 v1, 4, v0')
    A('v_add_lshl_u32 v1, v1, v0, 4')
    A('v_add_u32 v1, %s, v1' % sT)
    A('s_add_u32 %s, %s, %d' % (sT, sT, FD + 8 * ESTR))
    A('v_lshl_add_u32 v2, v0, 3, %s' % sT)
    A('s_nop 4')
    for e in range(8):
        A('ds_write_b128 v1, %s offset:%d' % (vr(vO + 4 * e, 4), FD + ESTR * e))
    A('ds_write2_b32 v2, %s, %s offset0:0 offset1:1' % (v(vMc), v(vL)))
    A('v_mov_b32 v1, %d' % CNT)
    A('v_lshlrev_b32 v2, %s, 1' % sW)
    A('s_waitcnt lgkmcnt(0)')
    A('s_mov_b64 exec, 1')
    A('ds_or_b32 v1, v2')
    A('s_mov_b64 exec, -1')
    reset_acc()
    stamp(4)
    lab('L_nodump')
    if DFIRST:
        A('s_bitcmp0_b32 %s, %d' % (sFl, F_LAST))
        next_loads()
    A('s_bitcmp0_b32 %s, %d' % (sFl, F_LAST))
    A('s_cbranch_scc1 L_loop')
    stamp(5)
    C('own dump (lanes of column i), in d order')
    A('s_mov_b64 exec, %s' % OWNX)
    A('ds_write2_b32 %s, %s, %s offset0:0 offset1:1' % (v(vA2), v(vMc), v(vL)))
    for e in range(0, 8, 2):
        for r in range(4):
            A('ds_write2_b32 %s, %s, %s offset0:%d offset1:%d' % (v(vA1), v(vO + 4 * e + r), v(vO + 4 * e + 4 + r), 8 * r + e, 8 * r + e + 1))
    A('s_waitcnt lgkmcnt(0)')
    A('s_barrier')
    if ts:
        A('s_mov_b64 exec, -1')
        A('s_branch L_tsout')
    A('s_endpgm')
    lab('L_helper')
    vBT = 116; vNon = 132
    A('s_memrealtime s[48:49]')
    if 'noprio' not in dbg: A('s_setprio 3')
    if ts: A('s_mov_b32 %s, 7' % sW)
    A('v_lshlrev_b32 v1, 3, v0')
    srd_tail(rBT, 4096); srd_tail(rX, 32)
    A('v_and_b32 v18, 7, v0')
    A('v_lshrrev_b32 v19, 3, v0')
    A('v_lshlrev_b32 v6, 2, v18')
    A('v_lshlrev_b32 v7, 2, v19')
    A('v_mov_b32 v2, %d' % CNT)
    A('v_mov_b32 v4, 0')
    A('v_mov_b32 v5, 0')
    A('ds_write_b64 v2, v[4:5]')
    A('s_waitcnt lgkmcnt(0)')
    if ts: A('v_writelane_b32 %s, s100, 0' % v(vTS))
    srd_base(rBT, pbt); srd_base(rX, pctx)
    A('buffer_load_dword v20, v6, %s, 0 offen' % srd(rX))
    A('buffer_load_dword v21, v7, %s, 0 offen' % srd(rX))
    for b in range(8):
        A('buffer_load_dwordx2 %s, v1, %s, 0 offen offset:%d' % (vr(vBT + 2 * b, 2), srd(rBT), 512 * b))
    mk_srd(rY, pdbg, 256)
    if LD:
        C('tag of this launch for this head: owner 0 picks it and leaves it in d_debug (which starts at zero)')
        A('s_mul_i32 s48, s48, 0x9e3779b1')
        A('s_or_b32 %s, s48, 1' % sTag)
        A('s_lshl_b32 %s, %s, %d' % (sCen, sH, 2 if 'ld4' in dbg else 3))
        A('s_cmp_lg_u32 %s, 0' % sI)
        A('s_cbranch_scc1 L_notag')
        A('v_mov_b32 %s, %s' % (v(vNon), sTag))
        A('s_mov_b64 exec, 1')
        A('buffer_store_dword %s, off, %s, %s%s' % (v(vNon), srd(rY), sCen, '' if 'stp' in dbg else ' sc1'))
        A('s_mov_b64 exec, -1')
        A('s_waitcnt vmcnt(9)')
        lab('L_notag')
    else:
        C('tag of this launch for this head: first arriver wins (d_debug starts at zero)')
        A('s_mul_i32 s48, s48, 0x9e3779b1')
        A('s_or_b32 s48, s48, 1')
        A('v_mov_b32 %s, s48' % v(vNon))
        A('v_mov_b32 %s, 0' % v(vNon + 1))
        A('s_lshl_b32 %s, %s, 2' % (sT3, sH))
        A('s_mov_b64 exec, 1')
        if 'noatom' in dbg: A('s_mov_b32 s48, 0x1234567'); A('buffer_load_dword v132, off, %s, %s' % (srd(rY), sT3))
        else: A('buffer_atomic_cmpswap %s, off, %s, %s %ssc0 sc1' % (vr(vNon, 2), srd(rY), sT3, 'offset:128 ' if 'dd' in dbg else ''))
        A('s_mov_b64 exec, -1')
        A('s_mov_b32 %s, s48' % sTag)
    A('v_add_u32 v1, %d, v1' % FD)
    RED = ('quad_perm:[1,0,3,2]', 'quad_perm:[2,3,0,1]', 'row_half_mirror')
    def red8(op, r):
        for ctl in RED:
            A('s_nop 1')
            A('%s_dpp %s, %s, %s %s %s' % (op, r, r, r, ctl, DPP))
    A('v_mov_b32 v22, 0x800')
    A('s_waitcnt vmcnt(%d)' % (8 if LD else 9))
    C('lane = 8 p + b.  ctx -> blocks (ctx <= 0 acts as 2048; clamp to 2048): v20 by b, v21 by p')
    A('v_cmp_lt_i32 %s, 0, v20' % MA)
    A('v_cmp_lt_i32 %s, 0, v21' % MB)
    A('v_min_i32 v20, v20, v22')
    A('v_min_i32 v21, v21, v22')
    A('v_cndmask_b32 v20, v22, v20, %s' % MA)
    A('v_cndmask_b32 v21, v22, v21, %s' % MB)
    for r in ('v20', 'v21'):
        A('v_add_u32 %s, 15, %s' % (r, r))
        A('v_lshrrev_b32 %s, 4, %s' % (r, r))
    A('v_mov_b32 v23, v20')
    red8('v_max_u32', 'v23')
    A('s_nop 0')
    A('v_readfirstlane_b32 %s, v23' % sS)
    stamp(1)
    if LD:
        A('s_cmp_lg_u32 %s, 0' % sI)
        A('s_cbranch_scc0 L_w1')
        A('s_waitcnt vmcnt(0)')
        lab('L_w1')
    A('s_waitcnt vmcnt(1)')
    stamp(17)
    for b in range(8):
        A('ds_write_b64 v1, %s offset:%d' % (vr(vBT + 2 * b, 2), 512 * b))
    C('S = length of the prefix of table columns on which all eight sequences agree')
    for st in range(2):
        r = lambda b: v(vBT + 2 * b + st)
        mx, mn = v(8 + 2 * st), v(8 + 2 * st + 1)
        A('v_max3_u32 %s, %s, %s, %s' % (mx, r(0), r(1), r(2)))
        A('v_min3_u32 %s, %s, %s, %s' % (mn, r(0), r(1), r(2)))
        A('v_max3_u32 %s, %s, %s, %s' % (mx, mx, r(3), r(4)))
        A('v_min3_u32 %s, %s, %s, %s' % (mn, mn, r(3), r(4)))
        A('v_max3_u32 %s, %s, %s, %s' % (mx, mx, r(5), r(6)))
        A('v_min3_u32 %s, %s, %s, %s' % (mn, mn, r(5), r(6)))
        A('v_max_u32 %s, %s, %s' % (mx, mx, r(7)))
        A('v_min_u32 %s, %s, %s' % (mn, mn, r(7)))
        A('v_cmp_ne_u32 %s, %s, %s' % ((MA, MB)[st], mx, mn))
    A('s_nop 1')
    A('s_ff1_i32_b64 %s, %s' % (sT, MA))
    A('s_ff1_i32_b64 %s, %s' % (sT2, MB))
    A('s_lshl_b32 %s, %s, 1' % (sT, sT))
    A('s_lshl1_add_u32 %s, %s, 1' % (sT2, sT2))
    A('s_min_u32 %s, %s, %s' % (sS, sS, sT))
    A('s_min_u32 %s, %s, %s' % (sS, sS, sT2))
    C('private blocks n, quota Q = ceil((S + sum n) / 8)')
    for r in ('v20', 'v21'):
        A('v_subrev_u32 %s, %s, %s' % (r, sS, r))
        A('v_max_i32 %s, 0, %s' % (r, r))
    A('v_mov_b32 v24, v20')
    red8('v_add_u32', 'v24')
    A('v_add3_u32 v24, v24, %s, 7' % sS)
    A('v_lshrrev_b32 v25, 3, v24')
    A('v_min_u32 v26, v20, v25')
    A('v_min_u32 v27, v21, v25')
    A('v_sub_u32 v24, v25, v26')
    A('v_sub_u32 v25, v25, v27')
    A('v_sub_u32 v20, v20, v26')
    C('pool = shared blocks, then the excess; takers are served in falling order of spare room')
    A('v_lshlrev_b32 v22, 3, v24')
    A('v_lshlrev_b32 v23, 3, v25')
    A('v_sub_u32 v22, v22, v18')
    A('v_sub_u32 v23, v23, v19')
    A('v_cmp_gt_i32 %s, v22, v23' % MA)
    A('v_cmp_lt_u32 %s, v18, v19' % MB)
    A('v_lshlrev_b32 v23, 16, v20')
    A('v_cndmask_b32 v22, 0, v24, %s' % MA)
    A('v_cndmask_b32 v23, 0, v23, %s' % MB)
    A('v_or_b32 v22, v22, v23')
    red8('v_add_u32', 'v22')
    A('v_lshlrev_b32 v21, 5, v18')
    A('v_lshrrev_b32 v23, 16, v22')
    A('v_and_b32 v22, 0xffff, v22')
    A('ds_bpermute_b32 v28, v21, v23')
    A('v_readlane_b32 %s, v23, 56' % sT)
    A('v_readlane_b32 %s, v20, 7' % sT2)
    A('s_lshl_b32 %s, %s, 3' % (sT3, sI))
    A('s_add_u32 %s, %s, %s' % (sPn, sT, sT2))
    A('s_add_u32 %s, %s, %s' % (sPn, sPn, sS))
    A('v_sub_u32 v29, %s, v22' % sPn)
    A('v_med3_i32 v29, v29, 0, v25')
    A('v_readlane_b32 %s, v22, %s' % (sOff, sT3))
    A('v_readlane_b32 %s, v27, %s' % (sOwn, sT3))
    A('v_readlane_b32 %s, v29, %s' % (sF, sT3))
    C('scalars for the row search are only needed when the own slice of the pool reaches into the excess')
    A('s_waitcnt lgkmcnt(0)')
    A('s_add_u32 %s, %s, %s' % (sQ, sOff, sF))
    A('s_cmp_eq_u32 %s, 0' % sF)
    A('s_cselect_b32 %s, 0, %s' % (sQ, sQ))
    A('s_cmp_le_u32 %s, %s' % (sQ, sS))
    A('s_cselect_b32 %s, 0, 1' % sQ)
    A('s_cbranch_scc1 L_noexc')
    for b in range(1, 8):
        A('v_readlane_b32 s%d, v28, %d' % (sCum + b, b))
    A('v_sub_u32 v26, v26, v28')
    A('s_nop 0')
    for b in range(8):
        A('v_readlane_b32 s%d, v26, %d' % (sN + b, b))
    lab('L_noexc')
    A('s_add_u32 %s, %s, %s' % (sU, sF, sOwn))
    if ts:
        for k, r in ((12, sS), (13, sOff), (14, sF), (15, sU)):
            A('v_writelane_b32 %s, %s, %d' % (v(vTS), r, k))
    A('v_mov_b32 v1, v0')
    A('v_mov_b32 v12, %s' % sI)
    A('v_mov_b32 v13, 576')
    A('s_mov_b32 %s, 3' % sK)
    stamp(19)
    lab('L_items')
    C('table slot x = 8 R + 2 w + s holds list item 8 R + 4 s + w : (byte offset, 16 j | code | flags)')
    A('v_and_b32 v10, -8, v1')
    A('v_bfe_u32 v2, v1, 1, 2')
    A('v_add_u32 v10, v10, v2')
    A('v_and_b32 v2, 1, v1')
    A('v_lshl_add_u32 v11, v2, 2, v10')
    A('v_add_u32 v2, %s, v11' % sOff)
    A('v_subrev_u32 v3, %s, v2' % sS)
    A('v_mov_b32 v4, 0')
    A('s_cmp_eq_u32 %s, 0' % sQ)
    A('s_cbranch_scc1 L_norow')
    A('v_mov_b32 v5, s%d' % sN)
    for b in range(1, 8):
        m = MJ[b % 4]
        A('v_cmp_le_i32 %s, s%d, v3' % (m, sCum + b))
        A('v_mov_b32 v6, s%d' % (sN + b))
        A('s_nop 0')
        A('v_cndmask_b32 v4, v4, %d, %s' % (b, m))
        A('v_cndmask_b32 v5, v5, v6, %s' % m)
    A('v_add_u32 v5, v2, v5')
    lab('L_norow')
    A('v_cmp_gt_i32 %s, 0, v3' % MJ[0])
    A('v_subrev_u32 v6, %s, v11' % sF)
    A('v_cmp_gt_u32 %s, %s, v11' % (MJ[1], sF))
    A('v_cmp_gt_u32 %s, %s, v6' % (MJ[3], sOwn))
    A('v_cndmask_b32 v5, v5, v2, %s' % MJ[0])
    A('v_cndmask_b32 v3, v4, 8, %s' % MJ[0])
    A('v_add_u32 v6, %s, v6' % sS)
    A('v_cndmask_b32 v5, v6, v5, %s' % MJ[1])
    A('v_cndmask_b32 v3, v12, v3, %s' % MJ[1])
    A('v_cndmask_b32 v4, v12, v4, %s' % MJ[1])
    A('s_or_b64 %s, %s, %s' % (MJ[3], MJ[3], MJ[1]))
    A('v_lshl_add_u32 v4, v4, 7, v5')
    A('v_and_b32 v4, 0x3ff, v4')
    A('v_lshlrev_b32 v4, 2, v4')
    A('ds_read_b32 v8, v4 offset:%d' % FD)
    A('v_lshl_add_u32 v9, v5, 4, v3')
    A('v_mov_b32 v6, 0x40000000')
    A('v_cndmask_b32 v9, v6, v9, %s' % MJ[3])
    A('v_add_u32 v3, 8, v10')
    A('v_add_u32 v4, %d, v10' % (8 * TRIGREM))
    A('v_cmp_le_u32 %s, %s, v3' % (MJ[0], sU))
    A('v_cmp_le_u32 %s, %s, v4' % (MJ[1], sU))
    A('v_cmp_le_u32 %s, %s, v3' % (MJ[2], sF))
    A('v_cmp_gt_u32 vcc, %s, v10' % sF)
    A('s_and_b64 %s, %s, vcc' % (MJ[2], MJ[2]))
    for m, f in ((MJ[0], F_LAST), (MJ[1], F_TRIG), (MJ[2], F_DUMP)):
        A('v_or_b32 v2, 0x%x, v9' % (1 << f))
        A('v_cndmask_b32 v9, v9, v2, %s' % m)
    A('v_lshlrev_b32 v2, 3, v1')
    A('v_add_u32 v1, 64, v1')
    A('s_waitcnt lgkmcnt(0)')
    A('v_cndmask_b32 v8, v13, v8, %s' % MJ[3])
    A('v_lshlrev_b32 v8, 17, v8')
    A('ds_write_b64 v2, v[8:9] offset:%d' % ITEMS)
    A('s_add_u32 %s, %s, 7' % (sT, sU))
    A('v_readfirstlane_b32 %s, v1' % sT2)
    A('s_sub_u32 %s, %s, 1' % (sK, sK))
    A('s_cbranch_scc1 L_itdone')
    A('s_cmp_lt_u32 %s, %s' % (sT2, sT))
    A('s_cbranch_scc1 L_items')
    lab('L_itdone')
    stamp(20)
    A('s_waitcnt lgkmcnt(0)')
    A('s_barrier')
    stamp(11)
    if 'nopub' in dbg:
        A('s_barrier')
        if ts: A('s_branch L_tsout')
        A('s_endpgm')
    mk_srd(rWS, pws, WS_USED)
    mk_srd(rX, pout, 65536)
    C('row (producer p, column b) is published iff p holds shared blocks or excess of b, p != b')
    A('v_add_u32 v28, %s, v28' % sS)
    A('v_add_u32 v30, v22, v29')
    A('v_cmp_gt_u32 %s, v30, v28' % MA)
    A('v_add_u32 v28, v28, v20')
    A('v_cmp_lt_u32 %s, 0, v20' % MB)
    A('s_and_b64 %s, %s, %s' % (MA, MA, MB))
    A('v_cmp_lt_u32 %s, v22, v28' % MB)
    A('s_and_b64 %s, %s, %s' % (MA, MA, MB))
    A('v_cmp_gt_u32 %s, %s, v22' % (MB, sS))
    A('s_or_b64 %s, %s, %s' % (MA, MA, MB))
    A('v_cmp_lt_u32 %s, 0, v29' % MB)
    A('s_and_b64 %s, %s, %s' % (MA, MA, MB))
    A('v_cmp_ne_u32 %s, v18, v19' % MB)
    A('s_and_b64 %s, %s, %s' % (EX, MA, MB))
    if LD:
        A('s_cmp_eq_u32 %s, 0' % sI)
        A('s_cbranch_scc1 L_tagok')
        A('s_mov_b32 %s, 0' % sK)
        A('s_mov_b64 exec, 1')
        if 'ldp' in dbg:
            A('buffer_load_dword %s, off, %s, %s' % (v(vNon), srd(rY), sCen))
            A('s_branch L_tag1')
        lab('L_tag')
        A('buffer_load_dword %s, off, %s, %s sc1' % (v(vNon), srd(rY), sCen))
        lab('L_tag1')
        A('s_add_u32 %s, %s, 1' % (sK, sK))
        A('s_waitcnt vmcnt(0)')
        A('v_readfirstlane_b32 %s, %s' % (sTag, v(vNon)))
        A('s_nop 1')
        A('s_cmp_lg_u32 %s, 0' % sTag)
        A('s_cbranch_scc1 L_tagin')
        A('s_cmp_ge_u32 %s, 0x4000' % sK)
        A('s_cbranch_scc1 L_tagin')
        A('s_sleep 32')
        A('s_branch L_tag')
        lab('L_tagin')
        A('s_mov_b64 exec, -1')
        lab('L_tagok')
    else:
        A('s_waitcnt vmcnt(0)')
        A('v_readfirstlane_b32 %s, %s' % (sT, v(vNon)))
        A('s_nop 1')
        A('s_cmp_eq_u32 %s, 0' % sT)
        A('s_cselect_b32 %s, %s, %s' % (sTag, sTag, sT))
    A('v_mov_b32 %s, %s' % (v(vNon), sTag))
    C('census: every owner of this head notes (tag, XCD) in its slot of one line')
    A('s_getreg_b32 %s, hwreg(HW_REG_XCC_ID, 0, 4)' % sXc)
    A('s_lshl_b32 %s, %s, 7' % (sCen, sH))
    A('s_add_u32 %s, %s, %d' % (sCen, sCen, WS_C))
    A('s_lshl3_add_u32 %s, %s, %s' % (sT, sI, sCen))
    A('v_mov_b32 %s, %s' % (v(vNon + 1), sXc))
    A('s_mov_b64 exec, 1')
    A('buffer_store_dwordx2 %s, off, %s, %s' % (vr(vNon, 2), srd(rWS), sT))
    A('s_mov_b64 exec, -1')
    hA, hM, hL, hW, hX, hY = 52, 68, 72, 76, 84, 116
    A('v_lshrrev_b32 v1, 5, v0')
    A('v_and_b32 v2, 31, v0')
    A('s_cmp_eq_u32 %s, 0' % sF)
    A('s_cbranch_scc1 L_nopub')
    C('merge of the foreign dumps: register group q, half wave hf -> column 2 q + hf, lane c -> d = 4 c .. 4 c + 3')
    for r in range(16):
        A('v_mov_b32 %s, 0' % v(hA + r))
    for q in range(4):
        A('v_mov_b32 %s, 0x%08x' % (v(hM + q), SENT_MC))
        A('v_mov_b32 %s, 0' % v(hL + q))
    A('v_lshrrev_b32 v3, 3, v2')
    A('v_lshlrev_b32 v4, 4, v3')
    A('v_lshl_add_u32 v4, v1, 1, v4')
    A('v_lshlrev_b32 v9, 4, v1')
    A('v_add_lshl_u32 v4, v4, v3, 4')
    A('v_bfe_u32 v5, v2, 1, 2')
    A('v_lshl_add_u32 v4, v5, 2, v4')
    A('v_and_b32 v5, 1, v2')
    A('v_mul_u32_u24 v5, %d, v5' % (4 * ESTR))
    A('v_add_u32 v5, v4, v5')
    A('v_add_u32 v5, %d, v5' % FD)
    for k in range(1, 4):
        A('v_add_u32 v%d, %d, v5' % (5 + k, ESTR * k))
    A('s_min_u32 %s, %s, %d' % (sUf, sF, NS))
    C('fixed order (last wave first: it has the fewest foreign units)')
    A('v_mov_b32 v10, %d' % CNT)
    lab('L_next')
    A('s_sub_u32 %s, %s, 1' % (sUf, sUf))
    lab('L_spin1')
    A('ds_read_b32 v11, v10')
    A('s_waitcnt lgkmcnt(0)')
    A('v_readfirstlane_b32 %s, v11' % sT)
    A('s_nop 1')
    A('s_bitcmp1_b32 %s, %s' % (sT, sUf))
    A('s_cbranch_scc1 L_mrg')
    A('s_sleep %d' % (12 if 'ls' in dbg else 3))
    A('s_branch L_spin1')
    lab('L_mrg')
    stamp(3)
    A('s_cmp_lg_u32 %s, 0' % sUf)
    A('s_cbranch_scc1 L_nocen')
    A('v_lshlrev_b32 v138, 3, v0')
    A('s_mov_b64 exec, 0xff')
    A('buffer_load_dwordx2 v[136:137], v138, %s, %s offen%s' % (srd(rWS), sCen, '' if 'cenp' in dbg else ' sc1'))
    A('s_mov_b64 exec, -1')
    lab('L_nocen')
    A('s_mul_i32 %s, %s, %d' % (sT, sUf, DUMP))
    for k in range(5):
        A('v_add_u32 v%d, %s, v%d' % (13 + k, sT, 5 + k))
    for q in range(4):
        A('ds_read_b128 %s, v17 offset:%d' % (vr(hY + 4 * q, 4), FD + 8 * ESTR + 32 * q))
    for q in range(4):
        for k in range(4):
            A('ds_read2_b32 %s, v%d offset0:%d offset1:%d' % (vr(hX + 8 * q + 2 * k, 2), 13 + k, 16 * q, 16 * q + 4))
    A('s_waitcnt lgkmcnt(15)')
    for q in range(4):
        m0, l0, m1, l1 = [v(hY + 4 * q + t) for t in range(4)]
        A('v_max3_f32 v12, %s, %s, %s' % (v(hM + q), m0, m1))
        A('v_sub_f32 %s, %s, v12' % (v(hW + q), v(hM + q)))
        A('v_sub_f32 %s, %s, v12' % (m0, m0))
        A('v_sub_f32 %s, %s, v12' % (m1, m1))
        A('v_exp_f32 %s, %s' % (v(hW + q), v(hW + q)))
        A('v_exp_f32 %s, %s' % (m0, m0))
        A('v_exp_f32 %s, %s' % (m1, m1))
        A('v_mov_b32 %s, v12' % v(hM + q))
        A('v_mul_f32 %s, %s, %s' % (v(hL + q), v(hL + q), v(hW + q)))
        A('v_fmac_f32 %s, %s, %s' % (v(hL + q), m0, l0))
        A('v_fmac_f32 %s, %s, %s' % (v(hL + q), m1, l1))
        for k in range(4):
            A('v_mul_f32 %s, %s, %s' % (v(hA + 4 * q + k), v(hA + 4 * q + k), v(hW + q)))
    A('s_waitcnt lgkmcnt(0)')
    for q in range(4):
        for k in range(4):
            A('v_fmac_f32 %s, %s, %s' % (v(hA + 4 * q + k), v(hY + 4 * q), v(hX + 8 * q + 2 * k)))
            A('v_fmac_f32 %s, %s, %s' % (v(hA + 4 * q + k), v(hY + 4 * q + 2), v(hX + 8 * q + 2 * k + 1)))
    A('s_cmp_lg_u32 %s, 0' % sUf)
    A('s_cbranch_scc1 L_next')
    stamp(2)
    C('the low byte of every published float carries one byte of the tag')
    for k in range(4):
        A('s_mov_b32 %s, 0x%08x' % (sT, 0x07060500 + k))
        for q in range(4):
            A('v_perm_b32 %s, %s, %s, %s' % (v(hA + 4 * q + k), v(hA + 4 * q + k), v(vNon), sT))
    A('v_lshlrev_b32 v6, 3, v1')
    A('v_add_u32 v6, %d, v6' % MLS)
    for q in range(4):
        A('ds_write2_b32 v6, %s, %s offset0:%d offset1:%d' % (v(hM + q), v(hL + q), 4 * q, 4 * q + 1))
    C('publish the rows (h, b, i) that somebody waits for, and (m, l) of the eight columns as one line')
    A('s_lshl_b32 %s, %s, 3' % (sT, sI))
    A('s_lshr_b64 %s, %s, %s' % (MA, EX, sT))
    A('v_lshrrev_b32 v4, v1, s86')
    A('v_lshlrev_b32 v5, 12, v1')
    A('v_lshl_add_u32 v5, v2, 4, v5')
    A('v_mov_b32 v9, 0x40000000')
    A('s_lshl_b32 %s, %s, 6' % (sT, sH))
    A('s_add_u32 %s, %s, %s' % (sT, sT, sI))
    A('s_lshl_b32 %s, %s, 9' % (sT, sT))
    A('s_lshl_b32 %s, %s, 3' % (sT3, sH))
    A('s_add_u32 %s, %s, %s' % (sT3, sT3, sI))
    A('s_lshl_b32 %s, %s, 7' % (sT3, sT3))
    A('s_add_u32 %s, %s, %d' % (sT3, sT3, WS_P))
    for q in range(4):
        A('v_and_b32 v10, %d, v4' % (1 << (2 * q)))
        A('v_cmp_ne_u32 vcc, 0, v10')
        A('v_add_u32 v%d, %d, v5' % (13 + q, 8192 * q))
        A('s_nop 0')
        A('v_cndmask_b32 v%d, v9, v%d, vcc' % (13 + q, 13 + q))
    A('v_lshlrev_b32 v7, 3, v0')
    A('v_cmp_gt_u32 vcc, 8, v0')
    A('v_lshlrev_b32 v17, 4, v0')
    A('v_min_u32 v7, 56, v7')
    A('v_cndmask_b32 v17, v9, v17, vcc')
    A('s_waitcnt lgkmcnt(0)')
    A('ds_read_b64 v[8:9], v7 offset:%d' % MLS)
    A('v_mov_b32 v10, %s' % v(vNon))
    A('v_mov_b32 v11, %s' % v(vNon))
    C('all eight owners on this XCD: the rows may stay in its L2; otherwise write them through')
    A('s_waitcnt vmcnt(0) lgkmcnt(0)')
    A('v_cmp_eq_u32 %s, %s, v136' % (MB, sTag))
    A('v_cmp_eq_u32 vcc, %s, v137' % sXc)
    A('v_mov_b32 v134, v8')
    A('v_mov_b32 v135, v9')
    A('s_and_b32 %s, s88, vcc_lo' % sT2)
    A('s_and_b32 %s, %s, 0xff' % (sT2, sT2))
    A('s_cmp_eq_u32 %s, 0xff' % sT2)
    if ts == 1:
        A('s_cselect_b32 s100, 1, 0')
        A('v_writelane_b32 %s, s100, 21' % v(vTS))
    A('s_cbranch_scc0 L_st1')
    for sc in ('', ' sc1'):
        if sc: lab('L_st1')
        for q in range(4):
            A('buffer_store_dwordx4 %s, v%d, %s, %s offen%s' % (vr(hA + 4 * q, 4), 13 + q, srd(rWS), sT, sc))
        A('buffer_store_dwordx4 v[8:11], v17, %s, %s offen%s' % (srd(rWS), sT3, sc))
        if not sc: A('s_branch L_nopub')
    lab('L_nopub')
    stamp(4)
    C('gather addresses: group q, half hf -> producer 2 q + hf (rows of absent producers are pushed out of range)')
    A('s_lshr_b64 %s, %s, %s' % (MA, EX, sI))
    A('v_lshlrev_b32 v3, 4, v0')
    A('v_lshlrev_b32 v4, 3, v1')
    A('v_lshrrev_b32 v18, v4, s86')
    A('v_lshrrev_b32 v19, v4, s87')
    A('v_mov_b32 v20, 0x40000000')
    for q in range(4):
        A('v_and_b32 v21, 0x%x, %s' % (1 << (16 * (q & 1)), 'v18' if q < 2 else 'v19'))
        A('v_cmp_ne_u32 %s, 0, v21' % MJ[q])
        A('v_add_u32 v%d, %d, v3' % (24 + q, 1024 * q))
        A('s_nop 0')
        A('v_cndmask_b32 v%d, v20, v%d, %s' % (24 + q, 24 + q, MJ[q]))
    A('v_lshlrev_b32 v4, 3, v0')
    A('v_lshrrev_b64 v[18:19], v4, %s' % MA)
    A('v_and_b32 v4, 1, v18')
    A('v_cmp_gt_u32 %s, 8, v0' % MB)
    A('v_cmp_ne_u32 vcc, 0, v4')
    A('v_lshlrev_b32 v28, 7, v0')
    A('s_and_b64 %s, %s, vcc' % (MB, MB))
    A('v_cndmask_b32 v28, v20, v28, %s' % MB)
    A('s_lshl_b32 %s, %s, 3' % (sT, sH))
    A('s_add_u32 %s, %s, %s' % (sT2, sT, sI))
    A('s_lshl_b32 %s, %s, 12' % (sT2, sT2))
    A('s_lshl_b32 %s, %s, 7' % (sT, sT))
    A('s_lshl4_add_u32 %s, %s, %s' % (sT, sI, sT))
    A('s_add_u32 %s, %s, %d' % (sT, sT, WS_P))
    A('s_mov_b32 s86, 0'); A('s_mov_b32 s87, -1')
    A('s_mov_b32 s56, 0x0c0c0400'); A('s_mov_b32 s57, 0x04000c0c')
    C('LDS addresses of the own dumps: entry (w, par = half)')
    A('v_lshrrev_b32 v3, 3, v2')
    A('v_lshl_add_u32 v3, v1, 2, v3')
    A('v_mul_u32_u24 v3, 144, v3')
    A('v_and_b32 v4, 7, v2')
    A('v_lshl_add_u32 v3, v4, 4, v3')
    A('v_lshlrev_b32 v4, 3, v1')
    C('look at global memory only when the local stream is close to its end')
    A('v_mov_b32 v5, %d' % CNT)
    lab('L_spin3')
    A('ds_read_b32 v6, v5 offset:4')
    A('s_waitcnt lgkmcnt(0)')
    A('v_readfirstlane_b32 %s, v6' % sK)
    A('s_nop 1')
    A('s_cmp_ge_u32 %s, 1' % sK)
    A('s_cbranch_scc1 L_go')
    A('s_sleep %d' % (12 if 'ls' in dbg else 4))
    A('s_branch L_spin3')
    lab('L_go')
    stamp(10)
    C('fetch the tagged rows until every one of them carries the tag of this launch (bounded)')
    A('s_mov_b32 %s, 0' % sK)
    fO = 84
    lab('L_spin2')
    A('buffer_load_dwordx4 v[12:15], v28, %s, %s offen sc1' % (srd(rWS), sT))
    for q in range(4):
        A('buffer_load_dwordx4 %s, v%d, %s, %s offen sc1' % (vr(fO + 4 * q, 4), 24 + q, srd(rWS), sT2))
    A('s_add_u32 %s, %s, 1' % (sK, sK))
    A('s_waitcnt vmcnt(4)')
    A('v_cmp_ne_u32 vcc, %s, v14' % sTag)
    A('s_and_b64 s[58:59], vcc, %s' % MB)
    for q in range(4):
        A('s_waitcnt vmcnt(%d)' % (3 - q))
        A('v_perm_b32 v16, %s, %s, s56' % (v(fO + 4 * q + 1), v(fO + 4 * q)))
        A('v_perm_b32 v17, %s, %s, s57' % (v(fO + 4 * q + 3), v(fO + 4 * q + 2)))
        A('v_or_b32 v16, v16, v17')
        A('v_cmp_ne_u32 vcc, %s, v16' % sTag)
        A('s_and_b64 vcc, vcc, %s' % MJ[q])
        A('s_or_b64 s[58:59], s[58:59], vcc')
    A('s_cbranch_scc0 L_got')
    A('s_cmp_ge_u32 %s, 0x4000' % sK)
    A('s_cbranch_scc1 L_got')
    A('s_sleep %d' % SLEEP)
    A('s_branch L_spin2')
    lab('L_got')
    stamp(5)
    if ts == 1: A('v_writelane_b32 %s, %s, 16' % (v(vTS), sK))
    A('v_mov_b32 v7, 0x%08x' % SENT_MC)
    A('v_cndmask_b32 v12, v7, v12, %s' % MB)
    C('the own column of the own foreign part never left the registers')
    A('s_cmp_eq_u32 %s, 0' % sF)
    A('s_cbranch_scc1 L_noown')
    A('v_cmp_eq_u32 vcc, %s, v0' % sI)
    A('v_subrev_u32 v8, v1, %s' % sI)
    A('s_nop 0')
    A('v_cndmask_b32 v12, v12, v134, vcc')
    A('v_cndmask_b32 v13, v13, v135, vcc')
    for q in range(4):
        A('v_cmp_eq_u32 vcc, %d, v8' % (2 * q))
        A('s_nop 1')
        for k in range(4):
            A('v_cndmask_b32 %s, %s, %s, vcc' % (v(fO + 4 * q + k), v(fO + 4 * q + k), v(hA + 4 * q + k)))
    lab('L_noown')
    A('v_mov_b32 v8, v12')
    red8('v_max_f32', 'v8')
    A('v_sub_f32 v12, v12, v8')
    A('v_exp_f32 v12, v12')
    A('v_readlane_b32 s52, v8, 0')
    A('v_mul_f32 v13, v12, v13')
    for p in range(8):
        A('v_readlane_b32 s%d, v12, %d' % (44 + p, p))
    red8('v_add_f32', 'v13')
    for q in range(4):
        A('v_mov_b32 v8, s%d' % (44 + 2 * q))
        A('v_mov_b32 v9, s%d' % (45 + 2 * q))
        A('v_cndmask_b32 %s, v8, v9, %s' % (v(hW + q), MA))
    A('v_readlane_b32 s53, v13, 0')
    for r in range(16):
        A('v_and_b32 %s, 0xffffff00, %s' % (v(fO + r), v(fO + r)))
    for k in range(4):
        A('v_mul_f32 %s, %s, %s' % (v(hA + k), v(hW), v(fO + k)))
    for q in range(1, 4):
        for k in range(4):
            A('v_fmac_f32 %s, %s, %s' % (v(hA + k), v(hW + q), v(fO + 4 * q + k)))
    A('v_mov_b32 v16, s53')
    A('v_cndmask_b32 v18, v16, 0, %s' % MA)
    A('s_lshl_b32 %s, %s, 5' % (sT, sI))
    A('s_add_u32 %s, %s, %s' % (sT, sT, sH))
    A('s_lshl_b32 %s, %s, 8' % (sT, sT))
    A('v_lshlrev_b32 v7, 3, v2')
    A('v_lshl_add_u32 v7, v1, 2, v7')
    if 'wbl2' in dbg:
        A('s_and_b32 %s, s2, 0xf8' % sT2)
        A('s_cmp_lg_u32 %s, 24' % sT2)
        A('s_cbranch_scc1 L_nowb')
        A('buffer_wbl2 sc1')
        lab('L_nowb')
    stamp(6)
    A('s_barrier')
    stamp(7)
    oM = 8; oX = 84
    for w in range(NS):
        A('ds_read_b64 %s, v4 offset:%d' % (vr(oM + 2 * w, 2), OWNML + 16 * w))
    for w in range(NS):
        A('ds_read_b128 %s, v3 offset:%d' % (vr(oX + 4 * w, 4), OWN + 1152 * w))
    A('s_waitcnt lgkmcnt(4)')
    A('v_max3_f32 v20, %s, %s, s52' % (v(oM), v(oM + 2)))
    A('v_max3_f32 v20, v20, %s, %s' % (v(oM + 4), v(oM + 6)))
    A('v_mov_b32 v21, v20')
    A('s_nop 1')
    A('v_permlane32_swap_b32 v21, v20')
    A('v_max_f32 v20, v21, v20')
    A('v_sub_f32 v16, s52, v20')
    for w in range(NS):
        A('v_sub_f32 %s, %s, v20' % (v(oM + 2 * w), v(oM + 2 * w)))
    A('v_exp_f32 v16, v16')
    for w in range(NS):
        A('v_exp_f32 %s, %s' % (v(oM + 2 * w), v(oM + 2 * w)))
    A('v_mul_f32 v18, v18, v16')
    A('v_pk_mul_f32 %s, %s, v[16:17] op_sel_hi:[1,0]' % (vr(hA, 2), vr(hA, 2)))
    A('v_pk_mul_f32 %s, %s, v[16:17] op_sel_hi:[1,0]' % (vr(hA + 2, 2), vr(hA + 2, 2)))
    for w in range(NS):
        A('v_fmac_f32 v18, %s, %s' % (v(oM + 2 * w), v(oM + 2 * w + 1)))
    A('s_waitcnt lgkmcnt(0)')
    A('v_mov_b32 v19, v18')
    for w in range(NS):
        for k in (0, 2):
            A('v_pk_fma_f32 %s, %s, %s, %s op_sel_hi:[1,0,1]' % (vr(hA + k, 2), vr(oX + 4 * w + k, 2), vr(oM + 2 * w, 2), vr(hA + k, 2)))
        if w == 0:
            A('v_permlane32_swap_b32 v19, v18')
            A('v_add_f32 v18, v18, v19')
            A('v_rcp_f32 v18, v18')
    A('s_nop 1')
    C('lower half keeps d = 4 c, 4 c + 1 ; upper half 4 c + 2, 4 c + 3')
    A('v_permlane32_swap_b32 %s, %s' % (v(hA), v(hA + 2)))
    A('v_permlane32_swap_b32 %s, %s' % (v(hA + 1), v(hA + 3)))
    A('v_pk_add_f32 %s, %s, %s' % (vr(hA, 2), vr(hA, 2), vr(hA + 2, 2)))
    A('v_pk_mul_f32 %s, %s, v[18:19] op_sel_hi:[1,0]' % (vr(hA, 2), vr(hA, 2)))
    A('v_cvt_pk_bf16_f32 v10, %s, %s' % (v(hA), v(hA + 1)))
    A('buffer_store_dword v10, v7, %s, %s offen%s' % (srd(rX), sT, ' sc0 sc1 nt' if 'oall' in dbg else ' sc1' if 'osc1' in dbg else ' nt' if 'ont' in dbg else ''))
    if ts:
        stamp(8)
        lab('L_tsout')
        A('s_waitcnt vmcnt(0)')
        stamp(9)
        mk_srd(rWS, pws, 0x2000000)
        A('s_lshl_b32 %s, s2, 3' % sT)
        A('s_add_u32 %s, %s, %s' % (sT, sT, sW))
        A('s_lshl_b32 %s, %s, 8' % (sT, sT))
        A('s_add_u32 %s, %s, 0x1000000' % (sT, sT))
        A('v_lshlrev_b32 v1, 2, v0')
        A('buffer_store_dword %s, v1, %s, %s offen' % (v(vTS), srd(rWS), sT))
        if 'dd' in dbg:
            mk_srd(rY, pdbg, 64)
            A('v_readlane_b32 s44, %s, 0' % v(vTS))
            for k, (a_, b_) in enumerate(((3, 17), (1, 20), (17, 6), (9, 9))):
                A('v_readlane_b32 s45, %s, %d' % (v(vTS), a_))
                A('v_readlane_b32 s46, %s, %d' % (v(vTS), b_))
                A('s_cmp_eq_u32 %s, 7' % sW)
                A('s_cselect_b32 s45, s46, s45')
                A('s_sub_u32 s45, s45, s44')
                A('v_mov_b32 v%d, s45' % (4 + k))
            A('s_cmp_eq_u32 %s, 7' % sW)
            A('s_cselect_b32 s47, 16, 0')
            A('s_cmp_eq_u32 %s, 0' % sW)
            A('s_cselect_b32 s46, 1, 0')
            A('s_cmp_eq_u32 %s, 7' % sW)
            A('s_cselect_b32 s46, 1, s46')
            A('s_cmp_eq_u32 s2, 28')
            A('s_cselect_b32 s45, 32, 1024')
            A('s_cmp_eq_u32 s2, 1')
            A('s_cselect_b32 s45, 0, s45')
            A('s_cmp_eq_u32 s46, 0')
            A('s_cselect_b32 s45, 1024, s45')
            A('s_add_u32 s47, s47, s45')
            A('s_mov_b64 exec, 1')
            A('buffer_store_dwordx4 v[4:7], off, %s, s47' % srd(rY))
    lab('L_end')
    A('s_endpgm')
    L.append('.p2align 7')
    L.append('.type L_guess,@object')
    lab('L_guess')
    t = usual_table()
    for x in t: L.append('    .long 0x%08x' % x)
    L.append('.size L_guess, %d' % (4 * len(t)))
    nv = vTS + 1 if ts else NV
    out = header + '; @launch grid=(256,1,1) block=(%d,1,1) lds=%d\n' % ((NS + 1) * 64, LDS)
    out += DOC
    out += '.amdgcn_target "amdgcn-amd-amdhsa--gfx950"\n.text\n.globl %s_kernel\n.p2align 8\n.type %s_kernel,@function\n' % (NAME, NAME)
    out += '\n'.join(L) + '\n'
    out += '''.section .rodata,"a"
.p2align 6
.amdhsa_kernel %s_kernel
  .amdhsa_next_free_vgpr %d
  .amdhsa_next_free_sgpr 102
  .amdhsa_accum_offset %d
  .amdhsa_group_segment_fixed_size 0
  .amdhsa_kernarg_size 64
  .amdhsa_user_sgpr_count 2
  .amdhsa_user_sgpr_kernarg_segment_ptr 1
  .amdhsa_system_sgpr_workgroup_id_x 1
.end_amdhsa_kernel
''' % (NAME, nv, (nv + 3) // 4 * 4)
    return out

def header():
    ref = open('cdna_kernels/%s.s.ref' % NAME).read().splitlines()
    h = []
    for l in ref:
        if l.startswith('; @launch'): break
        h.append(l)
    return '\n'.join(h) + '\n'

if __name__ == '__main__':
    import argparse
    ap = argparse.ArgumentParser()
    ap.add_argument('-o', default='cdna_kernels/%s.s' % NAME)
    ap.add_argument('--pol', default='nt')
    ap.add_argument('--ts', type=int, default=0)
    ap.add_argument('--trig', type=int, default=2)
    ap.add_argument('--dbg', default='')
    ap.add_argument('--tpos', type=int, default=0)
    ap.add_argument('--dfirst', action='store_true')
    ap.add_argument('--sleep', type=int, default=16)
    ap.add_argument('--w2', type=int, default=0)
    ap.add_argument('--wm', type=lambda x: int(x, 16), default=0xff)
    ap.add_argument('--xm', type=lambda x: int(x, 16), default=0xf0)
    ap.add_argument('--win', type=int, default=6)
    ap.add_argument('--head', type=int, default=6)
    ap.add_argument('--perm', type=lambda x: int(x, 16), default=0x76245103)
    a = ap.parse_args()
    pol = '' if a.pol == 'def' else a.pol.replace('_', ' ')
    open(a.o, 'w').write(gen(pol, a.ts, header(), a.trig, a.dbg, a.win, a.head, a.perm, a.sleep, a.tpos, a.dfirst, a.w2, a.wm, a.xm))
```

```python
import sys, struct
import numpy as np

NAME = 'standalone__paged_block_table_kv_radixattention__sampling'
KV_BYTES = 75497472
NS = 4
ESTR = 276 * 4
DUMP = 8 * ESTR + 512
ITEMS = 0
OWNML = 2048
CNT = OWNML + 64
MLS = CNT + 32
OWN = 2560
FD = OWN + 8 * 576
EXC = FD + 4096
LDS = FD + NS * DUMP
WS_P = 32 * 8 * 8 * 512
WS_C = WS_P + 32 * 8 * 128
WS_USED = WS_C + 32 * 128
F_DUMP, F_LAST, F_TRIG = 16, 17, 18

DOC = '''; ---------------------------------------------------------------------------------------------------
; ---------------------------------------------------------------------------------------------------
'''

def f32bits(x):
    return struct.unpack('<I', struct.pack('<f', x))[0]
C_SCALE = f32bits(128 ** -0.5 * 1.4426950408889634)
SENT_RAW = f32bits(-1e30)
SENT_MC = f32bits(float(np.float32(-1e30) * np.float32(128 ** -0.5 * 1.4426950408889634)))

def plan(bt, ctx):
    nb = [(min(c, 2048) + 15) // 16 if c > 0 else 128 for c in ctx]
    S = 0
    while S < max(nb) and all(bt[b][S] == bt[0][S] for b in range(8)): S += 1
    n = [max(x - S, 0) for x in nb]
    Q = (S + sum(n) + 7) >> 3
    own = [min(x, Q) for x in n]
    take = [Q - x for x in own]
    pool = [bt[0][j] for j in range(S)]
    for b in range(8): pool += [bt[b][S + y] for y in range(own[b], n[b])]
    key = [take[b] * 8 - b for b in range(8)]
    out = []
    for i in range(8):
        off = sum(take[b] for b in range(8) if key[b] > key[i])
        out.append((pool[off:off + take[i]], [bt[i][S + y] for y in range(own[i])]))
    return out

def usual_table():
    bt = [list(range(64)) + [64 + 64 * b + j for j in range(64)] for b in range(8)]
    ctx = [2048 - ((b + 1) * 2654435761) % 512 for b in range(8)]
    p = [f + o + [576] * 8 for f, o in plan(bt, ctx)]
    return [p[i][x] << 17 for i in range(8) for x in range(2 * NS)]

def gen(pol='nt', ts=0, header='', TRIGREM=2, dbg='', W=6, H=6, PERM=0x76245103, SLEEP=16, TPOS=0, DFIRST=False, W2=0, WM=0xff, XM=0xf0):
    L = []
    def A(s): L.append('    ' + s)
    def lab(s): L.append(s + ':')
    def C(s): L.append('    ; ' + s)
    def v(i): return 'v%d' % i
    def vr(i, n): return 'v[%d:%d]' % (i, i + n - 1)
    def srd(r): return 's[%d:%d]' % (r, r + 3)
    def srd_tail(r, nbytes):
        A('s_mov_b32 s%d, %d' % (r + 2, nbytes)); A('s_mov_b32 s%d, 0x20000' % (r + 3))
    def srd_base(r, p):
        A('s_mov_b32 s%d, s%d' % (r, p)); A('s_and_b32 s%d, s%d, 0xffff' % (r + 1, p + 1))
    def mk_srd(r, p, nbytes):
        srd_base(r, p); srd_tail(r, nbytes)
    LD = 'cas' not in dbg.split(',')
    CPF = 8 if 'cpf8' in dbg else 256 if 'cpfa' in dbg else 16
    V0N = 1 if 'v01' in dbg else 2
    DPP = 'row_mask:0xf bank_mask:0xf'
    sW = 's3'
    pq, pk, pv, pbt, pctx, pout, pdbg, pws = 4, 6, 8, 10, 12, 14, 16, 18
    rK, rV, rBT, rX, rWS, rY = 20, 24, 28, 32, 36, 40
    sN, sCum = 44, 52
    sFl, sCA, sCB = 's44', 's45', 's48'
    OWNX = 's[50:51]'
    sH, sI, sH256, sS, sQ, sOff, sF, sK, sOwn, sU, sUf, sPn = ['s%d' % i for i in range(60, 72)]
    EX = 's[72:73]'; ODD = 's[74:75]'; BASE = 's[76:77]'
    selLo, selHi, sC = 's78', 's79', 's80'
    sXc, sCen = 's78', 's79'
    sOA, sOB, sDA, sDB, sT = 's81', 's82', 's83', 's84', 's85'
    sTag = sDB
    MA, MB = 's[86:87]', 's[88:89]'
    MJ = ['s[90:91]', 's[92:93]', 's[94:95]', 's[96:97]']
    sT2, sT3 = 's98', 's99'
    vKo = [8, 9]; vVo = [10, 11, 12, 13]
    vCtx, vNinf, vPm, vMr, vMc, vA1, vSo, vD, vLA, vLB = range(14, 24)
    vP, vQ, vS, vO, vK, vV, vL, vOne, vA2 = 24, 28, 36, 52, 84, 116, 148, 152, 156
    NV = 157
    vTS = 158
    def stamp(idx):
        if ts == 1 or (ts and idx == 9):
            A('s_memrealtime s[100:101]')
            A('s_waitcnt lgkmcnt(0)')
            A('v_writelane_b32 %s, s100, %d' % (v(vTS), idx))
    def stampk(off):
        if ts == 1:
            A('s_memrealtime s[100:101]')
            A('s_lshl_b32 m0, %s, 1' % sK)
            A('s_add_u32 m0, m0, %d' % (16 - 4 + off))
            A('s_waitcnt lgkmcnt(0)')
            A('v_writelane_b32 %s, s100, m0' % v(vTS))
    nw = [0]
    def window(k):
        if W2 and (WM >> k) & 1:
            nw[0] += 1
            A('s_cbranch_vccnz L_w%d' % nw[0])
            A('s_waitcnt vmcnt(%d)' % (W2 - 1))
            lab('L_w%d' % nw[0])
        A('s_waitcnt vmcnt(%d)' % (W - 1))
    def loadK(lo=0, hi=8, win=True):
        for n in range(lo, hi):
            j, hf = n >> 1, n & 1
            if win: window(n)
            A('buffer_load_dwordx4 %s, %s, %s, %s offen offset:%d %s' % (vr(vK + n * 4, 4), v(vKo[j & 1]), srd(rK), sOA if j < 2 else sOB, 128 * hf, pol))
    def loadV(lo=0, hi=8, cur=False):
        for i in range(lo, hi):
            so = (sCA if cur else sOA) if i < 4 else (sCB if cur else sOB)
            window(i)
            A('buffer_load_dwordx4 %s, %s, %s, %s offen %s' % (vr(vV + i * 4, 4), v(vVo[i & 3]), srd(rV), so, pol))
    def reset_acc():
        for r in range(32):
            A('v_mov_b32 %s, 0' % v(vO + r))
        for r in range(4):
            A('v_mov_b32 %s, 0' % v(vL + r))
        A('v_mov_b32 %s, 0x%08x' % (v(vMr), SENT_RAW))
        A('v_mov_b32 %s, 0x%08x' % (v(vMc), SENT_MC))

    lab(NAME + '_kernel')
    A('s_cmp_ge_u32 s2, 256')
    A('s_cbranch_scc1 L_end')
    A('s_load_dwordx16 s[4:19], s[0:1], 0')
    C('first round guessed from the usual table layout; checked against the real list below')
    A('s_getpc_b64 s[46:47]')
    lab('L_pc')
    A('s_and_b32 %s, s2, 56' % sT)
    A('s_lshl2_add_u32 %s, %s, L_guess-L_pc' % (sT, sT))
    A('s_load_dwordx8 s[52:59], s[46:47], %s' % sT)
    if ts:
        A('v_mov_b32 %s, 0' % v(vTS))
        A('s_memrealtime s[100:101]')
    if 'cpf' in dbg:
        C('pull the code of this kernel into L2 before the streams fill the memory queues')
        A('s_cmp_ge_u32 s2, %d' % CPF)
        A('s_cbranch_scc1 L_nocpf')
        A('v_lshlrev_b32 v2, 7, v0')
        A('v_cmp_gt_u32 vcc, L_guess-L_pc, v2')
        A('s_and_saveexec_b64 s[44:45], vcc')
        A('s_cbranch_execz L_cpf2')
        A('global_load_dword v3, v2, s[46:47]')
        lab('L_cpf2')
        A('s_mov_b64 exec, s[44:45]')
        lab('L_nocpf')
    A('v_lshrrev_b32 v1, 6, v0')
    A('v_and_b32 v0, 63, v0')
    A('v_readfirstlane_b32 %s, v1' % sW)
    C('owner i = (wg >> 3) & 7 of head h = perm(wg & 7) + 8 (wg >> 6): the eight owners of a head are neighbours')
    A('s_and_b32 %s, s2, 7' % sH)
    A('s_lshl_b32 %s, %s, 2' % (sH, sH))
    A('s_lshr_b32 %s, 0x%08x, %s' % (sH, PERM, sH))
    A('s_and_b32 %s, %s, 7' % (sH, sH))
    A('s_lshr_b32 %s, s2, 6' % sT)
    if 'crev' in dbg: A('s_xor_b32 %s, %s, 3' % (sT, sT))
    A('s_lshl3_add_u32 %s, %s, %s' % (sH, sT, sH))
    A('s_bfe_u32 %s, s2, 0x30003' % sI)
    A('s_lshl_b32 %s, %s, 8' % (sH256, sH))
    A('s_cmp_eq_u32 %s, 0' % sW)
    A('s_cbranch_scc1 L_helper')
    A('s_sub_u32 %s, %s, 1' % (sW, sW))
    A('s_mov_b32 m0, %s' % sW)
    C('lane = 16 G + 2 t + par.  K / Q: row t, bytes (2 G + par) 16 ; V: row 2 G, bytes (lane & 15) 16')
    A('v_lshrrev_b32 v2, 4, v0')
    A('v_bfe_u32 v4, v0, 1, 3')
    A('v_and_b32 v5, 1, v0')
    A('v_lshl_add_u32 %s, v4, 13, %s' % (v(vKo[0]), sH256))
    A('v_lshl_add_u32 %s, v2, 5, %s' % (v(vKo[0]), v(vKo[0])))
    A('v_lshl_add_u32 %s, v5, 4, %s' % (v(vKo[0]), v(vKo[0])))
    A('v_add_u32 %s, 0x10000, %s' % (v(vKo[1]), v(vKo[0])))
    srd_tail(rK, KV_BYTES)
    A('s_waitcnt lgkmcnt(0)')
    if ts: A('v_writelane_b32 %s, s100, 0' % v(vTS))
    A('s_movrels_b32 %s, s52' % sOA)
    A('s_movrels_b32 %s, s56' % sOB)
    srd_base(rK, pk)
    stamp(3)
    if 'probeK' in dbg:
        A('buffer_load_dword v36, off, %s, %s nt' % (srd(rK), sOA))
        A('s_waitcnt vmcnt(0)'); stamp(6)
        mk_srd(rV, pv, KV_BYTES)
        A('buffer_load_dword v36, off, %s, %s nt' % (srd(rV), sOA))
        A('s_waitcnt vmcnt(0)'); stamp(7)
        loadK(win=False)
        A('s_waitcnt vmcnt(7)'); stamp(8)
        A('s_waitcnt vmcnt(4)'); stamp(10)
        A('s_waitcnt vmcnt(0)'); stamp(11)
    if 'probe1' in dbg:
        loadK(0, 1, win=False)
        A('s_waitcnt vmcnt(0)'); stamp(6)
        loadK(1, 2, win=False)
        A('s_waitcnt vmcnt(0)'); stamp(7)
        loadK(2, 8, win=False)
        A('s_waitcnt vmcnt(5)'); stamp(8)
        A('s_waitcnt vmcnt(3)'); stamp(10)
        A('s_waitcnt vmcnt(0)'); stamp(11)
    if 'vt1' in dbg:
        srd_base(rV, pv)
        loadK(0, 1, win=False)
        A('buffer_load_dword v36, off, %s, %s' % (srd(rV), sOA))
        loadK(1, 8, win=False)
    else:
        loadK(win=False)
    mk_srd(rX, pq, 65536); mk_srd(rY, pctx, 32); mk_srd(rV, pv, KV_BYTES)
    A('v_and_b32 v3, 15, v0')
    A('v_lshl_add_u32 %s, v2, 14, %s' % (v(vVo[0]), sH256))
    A('v_lshl_add_u32 %s, v3, 4, %s' % (v(vVo[0]), v(vVo[0])))
    A('v_add_u32 %s, 0x2000, %s' % (v(vVo[1]), v(vVo[0])))
    A('v_add_u32 %s, 0x10000, %s' % (v(vVo[2]), v(vVo[0])))
    A('v_add_u32 %s, 0x12000, %s' % (v(vVo[3]), v(vVo[0])))
    A('v_lshlrev_b32 v6, 2, v4')
    if 'vt2' in dbg:
        A('buffer_load_dword v36, off, %s, %s' % (srd(rV), sOA))
    A('buffer_load_dwordx4 %s, %s, %s, 0 offen' % (vr(vQ, 4), v(vKo[0]), srd(rX)))
    A('buffer_load_dwordx4 %s, %s, %s, 0 offen offset:128' % (vr(vQ + 4, 4), v(vKo[0]), srd(rX)))
    A('buffer_load_dword %s, v6, %s, 0 offen' % (v(vCtx), srd(rY)))
    A('s_mov_b32 s74, 0xaaaaaaaa'); A('s_mov_b32 s75, 0xaaaaaaaa')
    A('s_mov_b32 s76, 0x00030003'); A('s_mov_b32 s77, 0x00030003')
    A('s_mov_b32 %s, 0x05040100' % selLo); A('s_mov_b32 %s, 0x07060302' % selHi)
    A('s_mov_b32 %s, 0x%08x' % (sC, C_SCALE))
    A('v_mov_b32 %s, 0xff800000' % v(vNinf))
    A('v_mov_b32 v7, 0xffff0000')
    A('v_mov_b32 %s, 0xffff' % v(vPm))
    A('v_cndmask_b32 %s, %s, v7, %s' % (v(vPm), v(vPm), ODD))
    A('v_lshl_add_u32 v7, v2, 1, v5')
    for r in range(4):
        A('v_mov_b32 %s, 0x3f803f80' % v(vOne + r))
    C('addresses of the own dump: entry 2 w + par')
    A('s_lshl_b32 %s, %s, 1' % (sT, sW))
    A('v_add_u32 v3, %s, v5' % sT)
    A('v_lshlrev_b32 %s, 3, v3' % v(vA2))
    A('v_add_u32 %s, %d, %s' % (v(vA2), OWNML, v(vA2)))
    A('v_lshl_add_u32 v3, v3, 2, v2')
    A('v_mul_u32_u24 %s, 144, v3' % v(vA1))
    A('v_add_u32 %s, %d, %s' % (v(vA1), OWN, v(vA1)))
    A('s_lshl_b32 %s, %s, 1' % (sT2, sI))
    A('s_lshl_b64 %s, %s, %s' % (OWNX, BASE, sT2))
    C('item table address of lane k: slot 2 w + 8 (k >> 1) + (k & 1)')
    A('v_lshrrev_b32 v1, 1, v0')
    A('v_mad_u32_u24 v1, v1, %d, %s' % (2 * NS, sT))
    A('v_add_lshl_u32 v1, v1, v5, 3')
    reset_acc()
    def setv():
        if W2:
            A('s_and_b32 %s, s2, 7' % sT3)
            A('s_bitcmp1_b32 0x%x, %s' % (XM, sT3))
            A('s_cselect_b64 vcc, -1, 0')
    setv()
    A('s_mov_b32 %s, 0' % sK)
    if 'v0' in dbg:
        for i in range(V0N):
            A('buffer_load_dwordx4 %s, %s, %s, %s offen %s' % (vr(vV + i * 4, 4), v(vVo[i & 3]), srd(rV), sOA if i < 4 else sOB, pol))
        loadV(V0N, H)
    else:
        loadV(0, H)
    A('s_barrier')
    stamp(1)
    A('ds_read_b64 %s, v1 offset:%d' % (vr(vSo, 2), ITEMS))
    A('s_waitcnt vmcnt(%d)' % H)
    C('ctx fix-up per lane; ctx <= 0 masks every key in the reference, i.e. uniform weights: q = 0, ctx = 2048')
    A('v_cmp_lt_i32 vcc, 0, %s' % v(vCtx))
    A('v_mov_b32 v2, 0x800')
    A('v_min_i32 %s, %s, v2' % (v(vCtx), v(vCtx)))
    A('v_cndmask_b32 %s, v2, %s, vcc' % (v(vCtx), v(vCtx)))
    for r in range(8):
        A('v_cndmask_b32 %s, 0, %s, vcc' % (v(vQ + r), v(vQ + r)))
    A('v_sub_u32 %s, %s, v7' % (v(vCtx), v(vCtx)))
    setv()
    A('s_waitcnt lgkmcnt(0)')
    A('v_readlane_b32 %s, %s, 0' % (sT, v(vSo)))
    A('v_readlane_b32 %s, %s, 1' % (sT2, v(vSo)))
    A('s_nop 1')
    A('s_xor_b32 s46, %s, %s' % (sT, sOA))
    A('s_xor_b32 s47, %s, %s' % (sT2, sOB))
    A('s_or_b32 s46, s46, s47')
    A('s_cbranch_scc1 L_redo')
    lab('L_loop')
    A('s_add_u32 %s, %s, 1' % (sT, sK))
    A('s_add_u32 %s, %s, 2' % (sT2, sK))
    A('s_add_u32 %s, %s, 3' % (sT3, sK))
    A('s_mov_b32 %s, %s' % (sCA, sOA))
    A('s_mov_b32 %s, %s' % (sCB, sOB))
    A('v_readlane_b32 %s, %s, %s' % (sDA, v(vD), sK))
    A('v_readlane_b32 %s, %s, %s' % (sDB, v(vD), sT))
    A('v_readlane_b32 %s, %s, %s' % (sOA, v(vSo), sT2))
    A('v_readlane_b32 %s, %s, %s' % (sOB, v(vSo), sT3))
    A('s_mov_b32 %s, %s' % (sK, sT2))
    A('s_mov_b32 %s, %s' % (sFl, sDA))
    def trigger():
        C('tell the helper that the local stream is close to its end')
        A('s_bitcmp0_b32 %s, %d' % (sFl, F_TRIG))
        A('s_cbranch_scc1 L_nt')
        A('v_mov_b32 v1, %d' % CNT)
        A('v_mov_b32 v4, 1')
        A('ds_write_b32 v1, v4 offset:4')
        lab('L_nt')
    if TPOS == 0: trigger()
    C('validity of the 4 x 8 keys per column: member of the block and position < ctx')
    for (d, m, lim) in ((sDA, MA, vLA), (sDB, MB, vLB)):
        A('s_and_b32 %s, %s, 7' % (sT, d))
        A('s_lshl_b32 %s, %s, 1' % (sT, sT))
        A('s_lshl_b64 %s, %s, %s' % (m, BASE, sT))
        A('s_bitcmp1_b32 %s, 3' % d)
        A('s_cselect_b64 %s, -1, %s' % (m, m))
        A('s_and_b32 %s, %s, 0x400007f0' % (d, d))
        A('v_subrev_u32 %s, %s, %s' % (v(lim), d, v(vCtx)))
        A('v_cndmask_b32 %s, -1, %s, %s' % (v(lim), v(lim), m))
    A('v_cmp_lt_i32 %s, 0, %s' % (MJ[0], v(vLA)))
    A('v_cmp_lt_i32 %s, 8, %s' % (MJ[1], v(vLA)))
    A('v_cmp_lt_i32 %s, 0, %s' % (MJ[2], v(vLB)))
    A('v_cmp_lt_i32 %s, 8, %s' % (MJ[3], v(vLB)))
    stampk(0)
    A('s_waitcnt vmcnt(%d)' % H)
    stampk(1)
    for hf in range(2):
        for j in range(4):
            d = vr(vS + 4 * j, 4)
            A('v_mfma_f32_16x16x32_bf16 %s, %s, %s, %s' % (d, vr(vK + (j * 2 + hf) * 4, 4), vr(vQ + 4 * hf, 4), '0' if hf == 0 else d))
    tail = list(range(H, 8))
    def vtail(last=False):
        if tail:
            i = tail.pop(0); loadV(i, i + 1, cur=True)
        while last and tail:
            i = tail.pop(0); loadV(i, i + 1, cur=True)
    vtail()
    A('s_nop 4')
    D = lambda j, r: v(vS + 4 * j + r)
    qp = 'quad_perm:[1,0,3,2] ' + DPP
    C('rows and columns both carry the chunk parity: add the two diagonal halves; even lane key 2 G, odd lane key 2 G + 1')
    for j in range(4):
        A('v_add_f32_dpp %s, %s, %s %s' % (D(j, 0), D(j, 1), D(j, 0), qp))
        A('v_add_f32_dpp %s, %s, %s %s' % (D(j, 3), D(j, 2), D(j, 3), qp))
    for j in range(4):
        A('v_cndmask_b32 %s, %s, %s, %s' % (D(j, 0), D(j, 0), D(j, 3), ODD))
    for j in range(4):
        A('v_cndmask_b32 %s, %s, %s, %s' % (D(j, 0), v(vNinf), D(j, 0), MJ[j]))
    C('running maximum of the column (over the four lane groups)')
    A('v_max3_f32 v1, %s, %s, %s' % (D(0, 0), D(1, 0), D(2, 0)))
    A('v_max3_f32 v1, v1, %s, %s' % (D(3, 0), v(vMr)))
    A('v_mov_b32 v2, v1')
    A('s_nop 1')
    A('v_permlane16_swap_b32 v2, v1')
    A('v_max_f32 v1, v2, v1')
    A('v_mov_b32 v2, v1')
    A('s_nop 1')
    A('v_permlane32_swap_b32 v2, v1')
    A('v_max_f32 %s, v2, v1' % v(vMr))
    vtail()
    A('v_mul_f32 v1, %s, %s' % (sC, v(vMr)))
    A('v_sub_f32 v2, %s, v1' % v(vMc))
    A('v_mov_b32 %s, v1' % v(vMc))
    A('v_exp_f32 v2, v2')
    for j in range(4):
        A('v_fma_f32 %s, %s, %s, -v1' % (D(j, 1), D(j, 0), sC))
    for j in range(4):
        A('v_exp_f32 %s, %s' % (D(j, 1), D(j, 1)))
    for r in range(0, 8, 2):
        A('v_pk_mul_f32 %s, %s, v[2:3] op_sel_hi:[1,0]' % (vr(vO + r, 2), vr(vO + r, 2)))
    for j in range(4):
        A('v_cvt_pk_bf16_f32 %s, %s, %s' % (v(vP + j), D(j, 1), D(j, 1)))
    A('v_mul_f32 %s, %s, v2' % (v(vL), v(vL)))
    for j in range(4):
        A('v_and_b32 %s, %s, %s' % (v(vP + j), v(vPm), v(vP + j)))
    vtail()
    for r in range(8, 32, 2):
        A('v_pk_mul_f32 %s, %s, v[2:3] op_sel_hi:[1,0]' % (vr(vO + r, 2), vr(vO + r, 2)))
    C('denominator: all-ones rows times P')
    A('v_mfma_f32_16x16x32_bf16 %s, %s, %s, %s' % (vr(vL, 4), vr(vOne, 4), vr(vP, 4), vr(vL, 4)))
    vtail(True)
    if TPOS == 1: trigger()
    stampk(2)
    A('s_bitcmp0_b32 %s, %d' % (sFl, F_LAST))
    A('s_cbranch_scc0 L_k1')
    loadK(0, H)
    A('s_waitcnt vmcnt(%d)' % H)
    A('s_branch L_k2')
    lab('L_k1')
    A('s_waitcnt vmcnt(0)')
    lab('L_k2')
    if TPOS == 2: trigger()
    stampk(3)
    if ts == 1 or TPOS == 2: A('s_bitcmp0_b32 %s, %d' % (sFl, F_LAST))
    def perms(e):
        tb = vS + 4 * (e % 3)
        w = e >> 1
        for u in range(4):
            A('v_perm_b32 %s, %s, %s, %s' % (v(tb + u), v(vV + (2 * u + 1) * 4 + w), v(vV + (2 * u) * 4 + w), selHi if e & 1 else selLo))
    def pv_(e):
        tb = vS + 4 * (e % 3)
        A('v_mfma_f32_16x16x32_bf16 %s, %s, %s, %s' % (vr(vO + 4 * e, 4), vr(tb, 4), vr(vP, 4), vr(vO + 4 * e, 4)))
    ktail = list(range(H, 8))
    def kt():
        if ktail:
            n = ktail.pop(0)
            A('s_cbranch_scc0 L_kt%d' % n)
            loadK(n, n + 1)
            lab('L_kt%d' % n)
    C('V^T fragments by an in-lane 8 x 8 transpose; O^T tile e holds d = 32 G + 8 r + e')
    perms(0)
    for e in range(1, 8):
        perms(e)
        pv_(e - 1)
        if e in (1, 4): kt()
    A('s_nop 1')
    pv_(7)
    def next_loads():
        A('s_cbranch_scc0 L_v2')
        if ktail: loadK(ktail[0], 8)
        loadV(0, H)
        lab('L_v2')
    if not DFIRST: next_loads()
    A('s_bitcmp1_b32 %s, %d' % (sFl, F_DUMP))
    A('s_cbranch_scc1 L_dump')
    lab('L_nodump')
    if DFIRST:
        A('s_bitcmp0_b32 %s, %d' % (sFl, F_LAST))
        next_loads()
    A('s_bitcmp0_b32 %s, %d' % (sFl, F_LAST))
    A('s_cbranch_scc1 L_loop')
    stamp(5)
    C('own dump (lanes of column i), in d order')
    A('s_mov_b64 exec, %s' % OWNX)
    A('ds_write2_b32 %s, %s, %s offset0:0 offset1:1' % (v(vA2), v(vMc), v(vL)))
    for e in range(0, 8, 2):
        for r in range(4):
            A('ds_write2_b32 %s, %s, %s offset0:%d offset1:%d' % (v(vA1), v(vO + 4 * e + r), v(vO + 4 * e + 4 + r), 8 * r + e, 8 * r + e + 1))
    A('s_waitcnt lgkmcnt(0)')
    A('s_barrier')
    if ts:
        A('s_mov_b64 exec, -1')
        A('s_branch L_tsout')
    A('s_endpgm')
    C('hand the accumulators to the helper after the last foreign unit of this wave')
    lab('L_dump')
    A('s_mul_i32 %s, %s, %d' % (sT, sW, DUMP))
    A('v_lshrrev_b32 v1, 4, v0')
    A('v_add_lshl_u32 v1, v1, v0, 4')
    A('v_add_u32 v1, %s, v1' % sT)
    A('s_add_u32 %s, %s, %d' % (sT, sT, FD + 8 * ESTR))
    A('v_lshl_add_u32 v2, v0, 3, %s' % sT)
    A('s_nop 4')
    for e in range(8):
        A('ds_write_b128 v1, %s offset:%d' % (vr(vO + 4 * e, 4), FD + ESTR * e))
    A('ds_write2_b32 v2, %s, %s offset0:0 offset1:1' % (v(vMc), v(vL)))
    A('v_mov_b32 v1, %d' % CNT)
    A('v_lshlrev_b32 v2, %s, 1' % sW)
    A('s_waitcnt lgkmcnt(0)')
    A('s_mov_b64 exec, 1')
    A('ds_or_b32 v1, v2')
    A('s_mov_b64 exec, -1')
    reset_acc()
    stamp(4)
    A('s_branch L_nodump')
    lab('L_redo')
    C('the guess was wrong: fetch the real first unit')
    A('s_waitcnt vmcnt(0)')
    A('s_mov_b32 %s, %s' % (sOA, sT))
    A('s_mov_b32 %s, %s' % (sOB, sT2))
    loadK(win=False)
    loadV(0, H)
    A('s_branch L_loop')
    lab('L_helper')
    vBT = 116; vNon = 132
    A('s_memrealtime s[48:49]')
    if 'noprio' not in dbg: A('s_setprio 3')
    if ts: A('s_mov_b32 %s, 7' % sW)
    A('v_lshlrev_b32 v1, 3, v0')
    srd_tail(rBT, 4096); srd_tail(rX, 32)
    A('v_and_b32 v18, 7, v0')
    A('v_lshrrev_b32 v19, 3, v0')
    A('v_lshlrev_b32 v6, 2, v18')
    A('v_lshlrev_b32 v7, 2, v19')
    A('v_mov_b32 v2, %d' % CNT)
    A('v_mov_b32 v4, 0')
    A('v_mov_b32 v5, 0')
    A('ds_write_b64 v2, v[4:5]')
    A('s_waitcnt lgkmcnt(0)')
    if ts: A('v_writelane_b32 %s, s100, 0' % v(vTS))
    srd_base(rBT, pbt); srd_base(rX, pctx)
    A('buffer_load_dword v20, v6, %s, 0 offen' % srd(rX))
    A('buffer_load_dword v21, v7, %s, 0 offen' % srd(rX))
    for b in range(8):
        A('buffer_load_dwordx2 %s, v1, %s, 0 offen offset:%d' % (vr(vBT + 2 * b, 2), srd(rBT), 512 * b))
    mk_srd(rY, pdbg, 256)
    if LD:
        C('tag of this launch for this head: owner 0 picks it and leaves it in d_debug (which starts at zero)')
        A('s_mul_i32 s48, s48, 0x9e3779b1')
        A('s_or_b32 %s, s48, 1' % sTag)
        A('s_lshl_b32 %s, %s, %d' % (sCen, sH, 2 if 'ld4' in dbg else 3))
        A('s_cmp_lg_u32 %s, 0' % sI)
        A('s_cbranch_scc1 L_notag')
        A('v_mov_b32 %s, %s' % (v(vNon), sTag))
        A('s_mov_b64 exec, 1')
        A('buffer_store_dword %s, off, %s, %s%s' % (v(vNon), srd(rY), sCen, '' if 'stp' in dbg else ' sc1'))
        A('s_mov_b64 exec, -1')
        A('s_waitcnt vmcnt(9)')
        lab('L_notag')
    else:
        C('tag of this launch for this head: first arriver wins (d_debug starts at zero)')
        A('s_mul_i32 s48, s48, 0x9e3779b1')
        A('s_or_b32 s48, s48, 1')
        A('v_mov_b32 %s, s48' % v(vNon))
        A('v_mov_b32 %s, 0' % v(vNon + 1))
        A('s_lshl_b32 %s, %s, 2' % (sT3, sH))
        A('s_mov_b64 exec, 1')
        if 'noatom' in dbg: A('s_mov_b32 s48, 0x1234567'); A('buffer_load_dword v132, off, %s, %s' % (srd(rY), sT3))
        else: A('buffer_atomic_cmpswap %s, off, %s, %s %ssc0 sc1' % (vr(vNon, 2), srd(rY), sT3, 'offset:128 ' if 'dd' in dbg else ''))
        A('s_mov_b64 exec, -1')
        A('s_mov_b32 %s, s48' % sTag)
    A('v_add_u32 v1, %d, v1' % FD)
    RED = ('quad_perm:[1,0,3,2]', 'quad_perm:[2,3,0,1]', 'row_half_mirror')
    def red8(op, r):
        for ctl in RED:
            A('s_nop 1')
            A('%s_dpp %s, %s, %s %s %s' % (op, r, r, r, ctl, DPP))
    A('v_mov_b32 v22, 0x800')
    A('s_waitcnt vmcnt(%d)' % (8 if LD else 9))
    C('lane = 8 p + b.  ctx -> blocks (ctx <= 0 acts as 2048; clamp to 2048): v20 by b, v21 by p')
    A('v_cmp_lt_i32 %s, 0, v20' % MA)
    A('v_cmp_lt_i32 %s, 0, v21' % MB)
    A('v_min_i32 v20, v20, v22')
    A('v_min_i32 v21, v21, v22')
    A('v_cndmask_b32 v20, v22, v20, %s' % MA)
    A('v_cndmask_b32 v21, v22, v21, %s' % MB)
    for r in ('v20', 'v21'):
        A('v_add_u32 %s, 15, %s' % (r, r))
        A('v_lshrrev_b32 %s, 4, %s' % (r, r))
    A('v_mov_b32 v23, v20')
    red8('v_max_u32', 'v23')
    A('s_nop 0')
    A('v_readfirstlane_b32 %s, v23' % sS)
    stamp(1)
    if LD:
        A('s_cmp_lg_u32 %s, 0' % sI)
        A('s_cbranch_scc0 L_w1')
        A('s_waitcnt vmcnt(0)')
        lab('L_w1')
    A('s_waitcnt vmcnt(1)')
    stamp(17)
    for b in range(8):
        A('ds_write_b64 v1, %s offset:%d' % (vr(vBT + 2 * b, 2), 512 * b))
    C('S = length of the prefix of table columns on which all eight sequences agree')
    for st in range(2):
        r = lambda b: v(vBT + 2 * b + st)
        mx, mn = v(8 + 2 * st), v(8 + 2 * st + 1)
        A('v_max3_u32 %s, %s, %s, %s' % (mx, r(0), r(1), r(2)))
        A('v_min3_u32 %s, %s, %s, %s' % (mn, r(0), r(1), r(2)))
        A('v_max3_u32 %s, %s, %s, %s' % (mx, mx, r(3), r(4)))
        A('v_min3_u32 %s, %s, %s, %s' % (mn, mn, r(3), r(4)))
        A('v_max3_u32 %s, %s, %s, %s' % (mx, mx, r(5), r(6)))
        A('v_min3_u32 %s, %s, %s, %s' % (mn, mn, r(5), r(6)))
        A('v_max_u32 %s, %s, %s' % (mx, mx, r(7)))
        A('v_min_u32 %s, %s, %s' % (mn, mn, r(7)))
        A('v_cmp_ne_u32 %s, %s, %s' % ((MA, MB)[st], mx, mn))
    A('s_nop 1')
    A('s_ff1_i32_b64 %s, %s' % (sT, MA))
    A('s_ff1_i32_b64 %s, %s' % (sT2, MB))
    A('s_lshl_b32 %s, %s, 1' % (sT, sT))
    A('s_lshl1_add_u32 %s, %s, 1' % (sT2, sT2))
    A('s_min_u32 %s, %s, %s' % (sS, sS, sT))
    A('s_min_u32 %s, %s, %s' % (sS, sS, sT2))
    C('private blocks n, quota Q = ceil((S + sum n) / 8)')
    for r in ('v20', 'v21'):
        A('v_subrev_u32 %s, %s, %s' % (r, sS, r))
        A('v_max_i32 %s, 0, %s' % (r, r))
    A('v_mov_b32 v24, v20')
    red8('v_add_u32', 'v24')
    A('v_add3_u32 v24, v24, %s, 7' % sS)
    A('v_lshrrev_b32 v25, 3, v24')
    A('v_min_u32 v26, v20, v25')
    A('v_min_u32 v27, v21, v25')
    A('v_sub_u32 v24, v25, v26')
    A('v_sub_u32 v25, v25, v27')
    A('v_sub_u32 v20, v20, v26')
    C('pool = shared blocks, then the excess; takers are served in falling order of spare room')
    A('v_lshlrev_b32 v22, 3, v24')
    A('v_lshlrev_b32 v23, 3, v25')
    A('v_sub_u32 v22, v22, v18')
    A('v_sub_u32 v23, v23, v19')
    A('v_cmp_gt_i32 %s, v22, v23' % MA)
    A('v_cmp_lt_u32 %s, v18, v19' % MB)
    A('v_lshlrev_b32 v23, 16, v20')
    A('v_cndmask_b32 v22, 0, v24, %s' % MA)
    A('v_cndmask_b32 v23, 0, v23, %s' % MB)
    A('v_or_b32 v22, v22, v23')
    red8('v_add_u32', 'v22')
    A('v_lshlrev_b32 v21, 5, v18')
    A('v_lshrrev_b32 v23, 16, v22')
    A('v_and_b32 v22, 0xffff, v22')
    A('ds_bpermute_b32 v28, v21, v23')
    A('v_readlane_b32 %s, v23, 56' % sT)
    A('v_readlane_b32 %s, v20, 7' % sT2)
    A('s_lshl_b32 %s, %s, 3' % (sT3, sI))
    A('s_add_u32 %s, %s, %s' % (sPn, sT, sT2))
    A('s_add_u32 %s, %s, %s' % (sPn, sPn, sS))
    A('v_sub_u32 v29, %s, v22' % sPn)
    A('v_med3_i32 v29, v29, 0, v25')
    A('v_readlane_b32 %s, v22, %s' % (sOff, sT3))
    A('v_readlane_b32 %s, v27, %s' % (sOwn, sT3))
    A('v_readlane_b32 %s, v29, %s' % (sF, sT3))
    C('excess map: entry e of the excess = table index 128 b + j of that block; lane 8 t + b writes step t of row b')
    A('v_lshl_add_u32 v30, v18, 7, v26')
    A('v_add3_u32 v30, v30, %s, v19' % sS)
    A('v_mov_b32 v31, v19')
    A('s_waitcnt lgkmcnt(0)')
    A('v_add_lshl_u32 v32, v28, v19, 2')
    lab('L_exc')
    A('v_cmp_lt_u32 vcc, v31, v20')
    A('v_add_u32 v31, 8, v31')
    A('s_mov_b64 exec, vcc')
    A('ds_write_b32 v32, v30 offset:%d' % EXC)
    A('s_mov_b64 exec, -1')
    A('v_cmp_lt_u32 vcc, v31, v20')
    A('v_add_u32 v30, 8, v30')
    A('v_add_u32 v32, 32, v32')
    A('s_cbranch_vccnz L_exc')
    A('s_add_u32 %s, %s, %s' % (sU, sF, sOwn))
    if ts:
        for k, r in ((12, sS), (13, sOff), (14, sF), (15, sU)):
            A('v_writelane_b32 %s, %s, %d' % (v(vTS), r, k))
    A('v_mov_b32 v1, v0')
    A('s_lshl_b32 %s, %s, 7' % (sT, sI))
    A('s_add_u32 %s, %s, %s' % (sT, sT, sS))
    A('v_mov_b32 v12, %s' % sT)
    A('v_mov_b32 v13, 576')
    A('s_mov_b32 %s, 3' % sK)
    stamp(19)
    lab('L_items')
    C('table slot x = 8 R + 2 w + s holds list item 8 R + 4 s + w : (byte offset, 16 j | code | flags)')
    A('v_and_b32 v10, -8, v1')
    A('v_bfe_u32 v2, v1, 1, 2')
    A('v_add_u32 v10, v10, v2')
    A('v_and_b32 v2, 1, v1')
    A('v_lshl_add_u32 v11, v2, 2, v10')
    A('v_add_u32 v2, %s, v11' % sOff)
    A('v_subrev_u32 v3, %s, v2' % sS)
    A('v_and_b32 v4, 0x3ff, v3')
    A('v_lshlrev_b32 v4, 2, v4')
    A('ds_read_b32 v4, v4 offset:%d' % EXC)
    A('v_cmp_gt_i32 %s, 0, v3' % MJ[0])
    A('v_subrev_u32 v6, %s, v11' % sF)
    A('v_cmp_gt_u32 %s, %s, v11' % (MJ[1], sF))
    A('v_cmp_gt_u32 %s, %s, v6' % (MJ[3], sOwn))
    A('v_add_u32 v6, v12, v6')
    A('s_or_b64 %s, %s, %s' % (MJ[3], MJ[3], MJ[1]))
    A('s_and_b64 %s, %s, %s' % (MJ[2], MJ[0], MJ[1]))
    A('s_waitcnt lgkmcnt(0)')
    A('v_cndmask_b32 v4, v4, v2, %s' % MJ[0])
    A('v_cndmask_b32 v4, v6, v4, %s' % MJ[1])
    A('v_bfe_u32 v3, v4, 7, 3')
    A('v_and_b32 v5, 127, v4')
    A('v_cndmask_b32 v3, v3, 8, %s' % MJ[2])
    A('v_and_b32 v4, 0x3ff, v4')
    A('v_lshlrev_b32 v4, 2, v4')
    A('ds_read_b32 v8, v4 offset:%d' % FD)
    A('v_lshl_add_u32 v9, v5, 4, v3')
    A('v_mov_b32 v6, 0x40000000')
    A('v_cndmask_b32 v9, v6, v9, %s' % MJ[3])
    A('v_add_u32 v3, 8, v10')
    A('v_add_u32 v4, %d, v10' % (8 * TRIGREM))
    A('v_cmp_le_u32 %s, %s, v3' % (MJ[0], sU))
    A('v_cmp_le_u32 %s, %s, v4' % (MJ[1], sU))
    A('v_cmp_le_u32 %s, %s, v3' % (MJ[2], sF))
    A('v_cmp_gt_u32 vcc, %s, v10' % sF)
    A('s_and_b64 %s, %s, vcc' % (MJ[2], MJ[2]))
    for m, f in ((MJ[0], F_LAST), (MJ[1], F_TRIG), (MJ[2], F_DUMP)):
        A('v_or_b32 v2, 0x%x, v9' % (1 << f))
        A('v_cndmask_b32 v9, v9, v2, %s' % m)
    A('v_lshlrev_b32 v2, 3, v1')
    A('v_add_u32 v1, 64, v1')
    A('s_waitcnt lgkmcnt(0)')
    A('v_cndmask_b32 v8, v13, v8, %s' % MJ[3])
    A('v_lshlrev_b32 v8, 17, v8')
    A('ds_write_b64 v2, v[8:9] offset:%d' % ITEMS)
    A('s_add_u32 %s, %s, 7' % (sT, sU))
    A('v_readfirstlane_b32 %s, v1' % sT2)
    A('s_sub_u32 %s, %s, 1' % (sK, sK))
    A('s_cbranch_scc1 L_itdone')
    A('s_cmp_lt_u32 %s, %s' % (sT2, sT))
    A('s_cbranch_scc1 L_items')
    lab('L_itdone')
    stamp(20)
    A('s_waitcnt lgkmcnt(0)')
    A('s_barrier')
    stamp(11)
    if 'nopub' in dbg:
        A('s_barrier')
        if ts: A('s_branch L_tsout')
        A('s_endpgm')
    mk_srd(rWS, pws, WS_USED)
    mk_srd(rX, pout, 65536)
    C('row (producer p, column b) is published iff p holds shared blocks or excess of b, p != b')
    A('v_add_u32 v28, %s, v28' % sS)
    A('v_add_u32 v30, v22, v29')
    A('v_cmp_gt_u32 %s, v30, v28' % MA)
    A('v_add_u32 v28, v28, v20')
    A('v_cmp_lt_u32 %s, 0, v20' % MB)
    A('s_and_b64 %s, %s, %s' % (MA, MA, MB))
    A('v_cmp_lt_u32 %s, v22, v28' % MB)
    A('s_and_b64 %s, %s, %s' % (MA, MA, MB))
    A('v_cmp_gt_u32 %s, %s, v22' % (MB, sS))
    A('s_or_b64 %s, %s, %s' % (MA, MA, MB))
    A('v_cmp_lt_u32 %s, 0, v29' % MB)
    A('s_and_b64 %s, %s, %s' % (MA, MA, MB))
    A('v_cmp_ne_u32 %s, v18, v19' % MB)
    A('s_and_b64 %s, %s, %s' % (EX, MA, MB))
    if LD:
        A('s_cmp_eq_u32 %s, 0' % sI)
        A('s_cbranch_scc1 L_tagok')
        A('s_mov_b32 %s, 0' % sK)
        A('s_mov_b64 exec, 1')
        if 'ldp' in dbg:
            A('buffer_load_dword %s, off, %s, %s' % (v(vNon), srd(rY), sCen))
            A('s_branch L_tag1')
        lab('L_tag')
        A('buffer_load_dword %s, off, %s, %s sc1' % (v(vNon), srd(rY), sCen))
        lab('L_tag1')
        A('s_add_u32 %s, %s, 1' % (sK, sK))
        A('s_waitcnt vmcnt(0)')
        A('v_readfirstlane_b32 %s, %s' % (sTag, v(vNon)))
        A('s_nop 1')
        A('s_cmp_lg_u32 %s, 0' % sTag)
        A('s_cbranch_scc1 L_tagin')
        A('s_cmp_ge_u32 %s, 0x4000' % sK)
        A('s_cbranch_scc1 L_tagin')
        A('s_sleep 32')
        A('s_branch L_tag')
        lab('L_tagin')
        A('s_mov_b64 exec, -1')
        if ts == 1: A('v_writelane_b32 %s, %s, 22' % (v(vTS), sK))
        stamp(18)
        lab('L_tagok')
    else:
        A('s_waitcnt vmcnt(0)')
        A('v_readfirstlane_b32 %s, %s' % (sT, v(vNon)))
        A('s_nop 1')
        A('s_cmp_eq_u32 %s, 0' % sT)
        A('s_cselect_b32 %s, %s, %s' % (sTag, sTag, sT))
    A('v_mov_b32 %s, %s' % (v(vNon), sTag))
    C('census: every owner of this head notes (tag, XCD) in its slot of one line')
    A('s_getreg_b32 %s, hwreg(HW_REG_XCC_ID, 0, 4)' % sXc)
    A('s_lshl_b32 %s, %s, 7' % (sCen, sH))
    A('s_add_u32 %s, %s, %d' % (sCen, sCen, WS_C))
    A('s_lshl3_add_u32 %s, %s, %s' % (sT, sI, sCen))
    A('v_mov_b32 %s, %s' % (v(vNon + 1), sXc))
    A('s_mov_b64 exec, 1')
    A('buffer_store_dwordx2 %s, off, %s, %s' % (vr(vNon, 2), srd(rWS), sT))
    A('s_mov_b64 exec, -1')
    hA, hM, hL, hW, hX, hY = 52, 68, 72, 76, 84, 116
    A('v_lshrrev_b32 v1, 5, v0')
    A('v_and_b32 v2, 31, v0')
    A('s_cmp_eq_u32 %s, 0' % sF)
    A('s_cbranch_scc1 L_nopub')
    C('merge of the foreign dumps: register group q, half wave hf -> column 2 q + hf, lane c -> d = 4 c .. 4 c + 3')
    for r in range(16):
        A('v_mov_b32 %s, 0' % v(hA + r))
    for q in range(4):
        A('v_mov_b32 %s, 0x%08x' % (v(hM + q), SENT_MC))
        A('v_mov_b32 %s, 0' % v(hL + q))
    A('v_lshrrev_b32 v3, 3, v2')
    A('v_lshlrev_b32 v4, 4, v3')
    A('v_lshl_add_u32 v4, v1, 1, v4')
    A('v_lshlrev_b32 v9, 4, v1')
    A('v_add_lshl_u32 v4, v4, v3, 4')
    A('v_bfe_u32 v5, v2, 1, 2')
    A('v_lshl_add_u32 v4, v5, 2, v4')
    A('v_and_b32 v5, 1, v2')
    A('v_mul_u32_u24 v5, %d, v5' % (4 * ESTR))
    A('v_add_u32 v5, v4, v5')
    A('v_add_u32 v5, %d, v5' % FD)
    for k in range(1, 4):
        A('v_add_u32 v%d, %d, v5' % (5 + k, ESTR * k))
    A('s_min_u32 %s, %s, %d' % (sUf, sF, NS))
    C('fixed order (last wave first: it has the fewest foreign units)')
    A('v_mov_b32 v10, %d' % CNT)
    lab('L_next')
    A('s_sub_u32 %s, %s, 1' % (sUf, sUf))
    lab('L_spin1')
    A('ds_read_b32 v11, v10')
    A('s_waitcnt lgkmcnt(0)')
    A('v_readfirstlane_b32 %s, v11' % sT)
    A('s_nop 1')
    A('s_bitcmp1_b32 %s, %s' % (sT, sUf))
    A('s_cbranch_scc1 L_mrg')
    A('s_sleep %d' % (12 if 'ls' in dbg else 3))
    A('s_branch L_spin1')
    lab('L_mrg')
    stamp(3)
    A('s_cmp_lg_u32 %s, 0' % sUf)
    A('s_cbranch_scc1 L_nocen')
    A('v_lshlrev_b32 v138, 3, v0')
    A('s_mov_b64 exec, 0xff')
    A('buffer_load_dwordx2 v[136:137], v138, %s, %s offen%s' % (srd(rWS), sCen, '' if 'cenp' in dbg else ' sc1'))
    A('s_mov_b64 exec, -1')
    lab('L_nocen')
    A('s_mul_i32 %s, %s, %d' % (sT, sUf, DUMP))
    for k in range(5):
        A('v_add_u32 v%d, %s, v%d' % (13 + k, sT, 5 + k))
    for q in range(4):
        A('ds_read_b128 %s, v17 offset:%d' % (vr(hY + 4 * q, 4), FD + 8 * ESTR + 32 * q))
    for q in range(4):
        for k in range(4):
            A('ds_read2_b32 %s, v%d offset0:%d offset1:%d' % (vr(hX + 8 * q + 2 * k, 2), 13 + k, 16 * q, 16 * q + 4))
    A('s_waitcnt lgkmcnt(15)')
    for q in range(4):
        m0, l0, m1, l1 = [v(hY + 4 * q + t) for t in range(4)]
        A('v_max3_f32 v12, %s, %s, %s' % (v(hM + q), m0, m1))
        A('v_sub_f32 %s, %s, v12' % (v(hW + q), v(hM + q)))
        A('v_sub_f32 %s, %s, v12' % (m0, m0))
        A('v_sub_f32 %s, %s, v12' % (m1, m1))
        A('v_exp_f32 %s, %s' % (v(hW + q), v(hW + q)))
        A('v_exp_f32 %s, %s' % (m0, m0))
        A('v_exp_f32 %s, %s' % (m1, m1))
        A('v_mov_b32 %s, v12' % v(hM + q))
        A('v_mul_f32 %s, %s, %s' % (v(hL + q), v(hL + q), v(hW + q)))
        A('v_fmac_f32 %s, %s, %s' % (v(hL + q), m0, l0))
        A('v_fmac_f32 %s, %s, %s' % (v(hL + q), m1, l1))
        for k in range(4):
            A('v_mul_f32 %s, %s, %s' % (v(hA + 4 * q + k), v(hA + 4 * q + k), v(hW + q)))
    A('s_waitcnt lgkmcnt(0)')
    for q in range(4):
        for k in range(4):
            A('v_fmac_f32 %s, %s, %s' % (v(hA + 4 * q + k), v(hY + 4 * q), v(hX + 8 * q + 2 * k)))
            A('v_fmac_f32 %s, %s, %s' % (v(hA + 4 * q + k), v(hY + 4 * q + 2), v(hX + 8 * q + 2 * k + 1)))
    A('s_cmp_lg_u32 %s, 0' % sUf)
    A('s_cbranch_scc1 L_next')
    stamp(2)
    C('the low byte of every published float carries one byte of the tag')
    for k in range(4):
        A('s_mov_b32 %s, 0x%08x' % (sT, 0x07060500 + k))
        for q in range(4):
            A('v_perm_b32 %s, %s, %s, %s' % (v(hA + 4 * q + k), v(hA + 4 * q + k), v(vNon), sT))
    A('v_lshlrev_b32 v6, 3, v1')
    A('v_add_u32 v6, %d, v6' % MLS)
    for q in range(4):
        A('ds_write2_b32 v6, %s, %s offset0:%d offset1:%d' % (v(hM + q), v(hL + q), 4 * q, 4 * q + 1))
    C('publish the rows (h, b, i) that somebody waits for, and (m, l) of the eight columns as one line')
    A('s_lshl_b32 %s, %s, 3' % (sT, sI))
    A('s_lshr_b64 %s, %s, %s' % (MA, EX, sT))
    A('v_lshrrev_b32 v4, v1, s86')
    A('v_lshlrev_b32 v5, 12, v1')
    A('v_lshl_add_u32 v5, v2, 4, v5')
    A('v_mov_b32 v9, 0x40000000')
    A('s_lshl_b32 %s, %s, 6' % (sT, sH))
    A('s_add_u32 %s, %s, %s' % (sT, sT, sI))
    A('s_lshl_b32 %s, %s, 9' % (sT, sT))
    A('s_lshl_b32 %s, %s, 3' % (sT3, sH))
    A('s_add_u32 %s, %s, %s' % (sT3, sT3, sI))
    A('s_lshl_b32 %s, %s, 7' % (sT3, sT3))
    A('s_add_u32 %s, %s, %d' % (sT3, sT3, WS_P))
    for q in range(4):
        A('v_and_b32 v10, %d, v4' % (1 << (2 * q)))
        A('v_cmp_ne_u32 vcc, 0, v10')
        A('v_add_u32 v%d, %d, v5' % (13 + q, 8192 * q))
        A('s_nop 0')
        A('v_cndmask_b32 v%d, v9, v%d, vcc' % (13 + q, 13 + q))
    A('v_lshlrev_b32 v7, 3, v0')
    A('v_cmp_gt_u32 vcc, 8, v0')
    A('v_lshlrev_b32 v17, 4, v0')
    A('v_min_u32 v7, 56, v7')
    A('v_cndmask_b32 v17, v9, v17, vcc')
    A('s_waitcnt lgkmcnt(0)')
    A('ds_read_b64 v[8:9], v7 offset:%d' % MLS)
    A('v_mov_b32 v10, %s' % v(vNon))
    A('v_mov_b32 v11, %s' % v(vNon))
    C('all eight owners on this XCD: the rows may stay in its L2; otherwise write them through')
    A('s_waitcnt vmcnt(0) lgkmcnt(0)')
    A('v_cmp_eq_u32 %s, %s, v136' % (MB, sTag))
    A('v_cmp_eq_u32 vcc, %s, v137' % sXc)
    A('v_mov_b32 v134, v8')
    A('v_mov_b32 v135, v9')
    A('s_and_b32 %s, s88, vcc_lo' % sT2)
    A('s_and_b32 %s, %s, 0xff' % (sT2, sT2))
    A('s_cmp_eq_u32 %s, 0xff' % sT2)
    if ts == 1:
        A('s_cselect_b32 s100, 1, 0')
        A('v_writelane_b32 %s, s100, 21' % v(vTS))
    A('s_cbranch_scc0 L_st1')
    for sc in ('', ' sc1'):
        if sc: lab('L_st1')
        for q in range(4):
            A('buffer_store_dwordx4 %s, v%d, %s, %s offen%s' % (vr(hA + 4 * q, 4), 13 + q, srd(rWS), sT, sc))
        A('buffer_store_dwordx4 v[8:11], v17, %s, %s offen%s' % (srd(rWS), sT3, sc))
        if not sc: A('s_branch L_nopub')
    lab('L_nopub')
    stamp(4)
    C('gather addresses: group q, half hf -> producer 2 q + hf (rows of absent producers are pushed out of range)')
    A('s_lshr_b64 %s, %s, %s' % (MA, EX, sI))
    A('v_lshlrev_b32 v3, 4, v0')
    A('v_lshlrev_b32 v4, 3, v1')
    A('v_lshrrev_b32 v18, v4, s86')
    A('v_lshrrev_b32 v19, v4, s87')
    A('v_mov_b32 v20, 0x40000000')
    for q in range(4):
        A('v_and_b32 v21, 0x%x, %s' % (1 << (16 * (q & 1)), 'v18' if q < 2 else 'v19'))
        A('v_cmp_ne_u32 %s, 0, v21' % MJ[q])
        A('v_add_u32 v%d, %d, v3' % (24 + q, 1024 * q))
        A('s_nop 0')
        A('v_cndmask_b32 v%d, v20, v%d, %s' % (24 + q, 24 + q, MJ[q]))
    A('v_lshlrev_b32 v4, 3, v0')
    A('v_lshrrev_b64 v[18:19], v4, %s' % MA)
    A('v_and_b32 v4, 1, v18')
    A('v_cmp_gt_u32 %s, 8, v0' % MB)
    A('v_cmp_ne_u32 vcc, 0, v4')
    A('v_lshlrev_b32 v28, 7, v0')
    A('s_and_b64 %s, %s, vcc' % (MB, MB))
    A('v_cndmask_b32 v28, v20, v28, %s' % MB)
    A('s_lshl_b32 %s, %s, 3' % (sT, sH))
    A('s_add_u32 %s, %s, %s' % (sT2, sT, sI))
    A('s_lshl_b32 %s, %s, 12' % (sT2, sT2))
    A('s_lshl_b32 %s, %s, 7' % (sT, sT))
    A('s_lshl4_add_u32 %s, %s, %s' % (sT, sI, sT))
    A('s_add_u32 %s, %s, %d' % (sT, sT, WS_P))
    A('s_mov_b32 s86, 0'); A('s_mov_b32 s87, -1')
    A('s_mov_b32 s56, 0x0c0c0400'); A('s_mov_b32 s57, 0x04000c0c')
    C('LDS addresses of the own dumps: entry (w, par = half)')
    A('v_lshrrev_b32 v3, 3, v2')
    A('v_lshl_add_u32 v3, v1, 2, v3')
    A('v_mul_u32_u24 v3, 144, v3')
    A('v_and_b32 v4, 7, v2')
    A('v_lshl_add_u32 v3, v4, 4, v3')
    A('v_lshlrev_b32 v4, 3, v1')
    C('look at global memory only when the local stream is close to its end')
    A('v_mov_b32 v5, %d' % CNT)
    lab('L_spin3')
    A('ds_read_b32 v6, v5 offset:4')
    A('s_waitcnt lgkmcnt(0)')
    A('v_readfirstlane_b32 %s, v6' % sK)
    A('s_nop 1')
    A('s_cmp_ge_u32 %s, 1' % sK)
    A('s_cbranch_scc1 L_go')
    A('s_sleep %d' % (12 if 'ls' in dbg else 4))
    A('s_branch L_spin3')
    lab('L_go')
    stamp(10)
    C('fetch the tagged rows until every one of them carries the tag of this launch (bounded)')
    A('s_mov_b32 %s, 0' % sK)
    fO = 84
    lab('L_spin2')
    A('buffer_load_dwordx4 v[12:15], v28, %s, %s offen sc1' % (srd(rWS), sT))
    for q in range(4):
        A('buffer_load_dwordx4 %s, v%d, %s, %s offen sc1' % (vr(fO + 4 * q, 4), 24 + q, srd(rWS), sT2))
    A('s_add_u32 %s, %s, 1' % (sK, sK))
    A('s_waitcnt vmcnt(4)')
    A('v_cmp_ne_u32 vcc, %s, v14' % sTag)
    A('s_and_b64 s[58:59], vcc, %s' % MB)
    for q in range(4):
        A('s_waitcnt vmcnt(%d)' % (3 - q))
        A('v_perm_b32 v16, %s, %s, s56' % (v(fO + 4 * q + 1), v(fO + 4 * q)))
        A('v_perm_b32 v17, %s, %s, s57' % (v(fO + 4 * q + 3), v(fO + 4 * q + 2)))
        A('v_or_b32 v16, v16, v17')
        A('v_cmp_ne_u32 vcc, %s, v16' % sTag)
        A('s_and_b64 vcc, vcc, %s' % MJ[q])
        A('s_or_b64 s[58:59], s[58:59], vcc')
    A('s_cbranch_scc0 L_got')
    A('s_cmp_ge_u32 %s, 0x4000' % sK)
    A('s_cbranch_scc1 L_got')
    A('s_sleep %d' % SLEEP)
    A('s_branch L_spin2')
    lab('L_got')
    stamp(5)
    if ts == 1: A('v_writelane_b32 %s, %s, 16' % (v(vTS), sK))
    A('v_mov_b32 v7, 0x%08x' % SENT_MC)
    A('v_cndmask_b32 v12, v7, v12, %s' % MB)
    C('the own column of the own foreign part never left the registers')
    A('s_cmp_eq_u32 %s, 0' % sF)
    A('s_cbranch_scc1 L_noown')
    A('v_cmp_eq_u32 vcc, %s, v0' % sI)
    A('v_subrev_u32 v8, v1, %s' % sI)
    A('s_nop 0')
    A('v_cndmask_b32 v12, v12, v134, vcc')
    A('v_cndmask_b32 v13, v13, v135, vcc')
    for q in range(4):
        A('v_cmp_eq_u32 vcc, %d, v8' % (2 * q))
        A('s_nop 1')
        for k in range(4):
            A('v_cndmask_b32 %s, %s, %s, vcc' % (v(fO + 4 * q + k), v(fO + 4 * q + k), v(hA + 4 * q + k)))
    lab('L_noown')
    A('v_mov_b32 v8, v12')
    red8('v_max_f32', 'v8')
    A('v_sub_f32 v12, v12, v8')
    A('v_exp_f32 v12, v12')
    A('v_readlane_b32 s52, v8, 0')
    A('v_mul_f32 v13, v12, v13')
    for p in range(8):
        A('v_readlane_b32 s%d, v12, %d' % (44 + p, p))
    red8('v_add_f32', 'v13')
    for q in range(4):
        A('v_mov_b32 v8, s%d' % (44 + 2 * q))
        A('v_mov_b32 v9, s%d' % (45 + 2 * q))
        A('v_cndmask_b32 %s, v8, v9, %s' % (v(hW + q), MA))
    A('v_readlane_b32 s53, v13, 0')
    for r in range(16):
        A('v_and_b32 %s, 0xffffff00, %s' % (v(fO + r), v(fO + r)))
    for k in range(4):
        A('v_mul_f32 %s, %s, %s' % (v(hA + k), v(hW), v(fO + k)))
    for q in range(1, 4):
        for k in range(4):
            A('v_fmac_f32 %s, %s, %s' % (v(hA + k), v(hW + q), v(fO + 4 * q + k)))
    A('v_mov_b32 v16, s53')
    A('v_cndmask_b32 v18, v16, 0, %s' % MA)
    A('s_lshl_b32 %s, %s, 5' % (sT, sI))
    A('s_add_u32 %s, %s, %s' % (sT, sT, sH))
    A('s_lshl_b32 %s, %s, 8' % (sT, sT))
    A('v_lshlrev_b32 v7, 3, v2')
    A('v_lshl_add_u32 v7, v1, 2, v7')
    if 'wbl2' in dbg:
        A('s_and_b32 %s, s2, 0xf8' % sT2)
        A('s_cmp_lg_u32 %s, 24' % sT2)
        A('s_cbranch_scc1 L_nowb')
        A('buffer_wbl2 sc1')
        lab('L_nowb')
    stamp(6)
    A('s_barrier')
    stamp(7)
    oM = 8; oX = 84
    for w in range(NS):
        A('ds_read_b64 %s, v4 offset:%d' % (vr(oM + 2 * w, 2), OWNML + 16 * w))
    for w in range(NS):
        A('ds_read_b128 %s, v3 offset:%d' % (vr(oX + 4 * w, 4), OWN + 1152 * w))
    A('s_waitcnt lgkmcnt(4)')
    A('v_max3_f32 v20, %s, %s, s52' % (v(oM), v(oM + 2)))
    A('v_max3_f32 v20, v20, %s, %s' % (v(oM + 4), v(oM + 6)))
    A('v_mov_b32 v21, v20')
    A('s_nop 1')
    A('v_permlane32_swap_b32 v21, v20')
    A('v_max_f32 v20, v21, v20')
    A('v_sub_f32 v16, s52, v20')
    for w in range(NS):
        A('v_sub_f32 %s, %s, v20' % (v(oM + 2 * w), v(oM + 2 * w)))
    A('v_exp_f32 v16, v16')
    for w in range(NS):
        A('v_exp_f32 %s, %s' % (v(oM + 2 * w), v(oM + 2 * w)))
    A('v_mul_f32 v18, v18, v16')
    A('v_pk_mul_f32 %s, %s, v[16:17] op_sel_hi:[1,0]' % (vr(hA, 2), vr(hA, 2)))
    A('v_pk_mul_f32 %s, %s, v[16:17] op_sel_hi:[1,0]' % (vr(hA + 2, 2), vr(hA + 2, 2)))
    for w in range(NS):
        A('v_fmac_f32 v18, %s, %s' % (v(oM + 2 * w), v(oM + 2 * w + 1)))
    A('s_waitcnt lgkmcnt(0)')
    A('v_mov_b32 v19, v18')
    for w in range(NS):
        for k in (0, 2):
            A('v_pk_fma_f32 %s, %s, %s, %s op_sel_hi:[1,0,1]' % (vr(hA + k, 2), vr(oX + 4 * w + k, 2), vr(oM + 2 * w, 2), vr(hA + k, 2)))
        if w == 0:
            A('v_permlane32_swap_b32 v19, v18')
            A('v_add_f32 v18, v18, v19')
            A('v_rcp_f32 v18, v18')
    A('s_nop 1')
    C('lower half keeps d = 4 c, 4 c + 1 ; upper half 4 c + 2, 4 c + 3')
    A('v_permlane32_swap_b32 %s, %s' % (v(hA), v(hA + 2)))
    A('v_permlane32_swap_b32 %s, %s' % (v(hA + 1), v(hA + 3)))
    A('v_pk_add_f32 %s, %s, %s' % (vr(hA, 2), vr(hA, 2), vr(hA + 2, 2)))
    A('v_pk_mul_f32 %s, %s, v[18:19] op_sel_hi:[1,0]' % (vr(hA, 2), vr(hA, 2)))
    A('v_cvt_pk_bf16_f32 v10, %s, %s' % (v(hA), v(hA + 1)))
    A('buffer_store_dword v10, v7, %s, %s offen%s' % (srd(rX), sT, ' sc0 sc1 nt' if 'oall' in dbg else ' sc1' if 'osc1' in dbg else ' nt' if 'ont' in dbg else ''))
    if ts:
        stamp(8)
        lab('L_tsout')
        A('s_waitcnt vmcnt(0)')
        stamp(9)
        mk_srd(rWS, pws, 0x2000000)
        A('s_lshl_b32 %s, s2, 3' % sT)
        A('s_add_u32 %s, %s, %s' % (sT, sT, sW))
        A('s_lshl_b32 %s, %s, 8' % (sT, sT))
        A('s_add_u32 %s, %s, 0x1000000' % (sT, sT))
        A('v_lshlrev_b32 v1, 2, v0')
        A('buffer_store_dword %s, v1, %s, %s offen' % (v(vTS), srd(rWS), sT))
        if 'dd' in dbg:
            mk_srd(rY, pdbg, 64)
            A('v_readlane_b32 s44, %s, 0' % v(vTS))
            for k, (a_, b_) in enumerate(((3, 17), (1, 20), (17, 6), (9, 9))):
                A('v_readlane_b32 s45, %s, %d' % (v(vTS), a_))
                A('v_readlane_b32 s46, %s, %d' % (v(vTS), b_))
                A('s_cmp_eq_u32 %s, 7' % sW)
                A('s_cselect_b32 s45, s46, s45')
                A('s_sub_u32 s45, s45, s44')
                A('v_mov_b32 v%d, s45' % (4 + k))
            A('s_cmp_eq_u32 %s, 7' % sW)
            A('s_cselect_b32 s47, 16, 0')
            A('s_cmp_eq_u32 %s, 0' % sW)
            A('s_cselect_b32 s46, 1, 0')
            A('s_cmp_eq_u32 %s, 7' % sW)
            A('s_cselect_b32 s46, 1, s46')
            A('s_cmp_eq_u32 s2, 28')
            A('s_cselect_b32 s45, 32, 1024')
            A('s_cmp_eq_u32 s2, 1')
            A('s_cselect_b32 s45, 0, s45')
            A('s_cmp_eq_u32 s46, 0')
            A('s_cselect_b32 s45, 1024, s45')
            A('s_add_u32 s47, s47, s45')
            A('s_mov_b64 exec, 1')
            A('buffer_store_dwordx4 v[4:7], off, %s, s47' % srd(rY))
    lab('L_end')
    A('s_endpgm')
    L.append('.p2align 7')
    L.append('.type L_guess,@object')
    lab('L_guess')
    t = usual_table()
    for x in t: L.append('    .long 0x%08x' % x)
    L.append('.size L_guess, %d' % (4 * len(t)))
    nv = vTS + 1 if ts else NV
    out = header + '; @launch grid=(256,1,1) block=(%d,1,1) lds=%d\n' % ((NS + 1) * 64, LDS)
    out += DOC
    out += '.amdgcn_target "amdgcn-amd-amdhsa--gfx950"\n.text\n.globl %s_kernel\n.p2align 8\n.type %s_kernel,@function\n' % (NAME, NAME)
    out += '\n'.join(L) + '\n'
    out += '''.section .rodata,"a"
.p2align 6
.amdhsa_kernel %s_kernel
  .amdhsa_next_free_vgpr %d
  .amdhsa_next_free_sgpr 102
  .amdhsa_accum_offset %d
  .amdhsa_group_segment_fixed_size 0
  .amdhsa_kernarg_size 64
  .amdhsa_user_sgpr_count 2
  .amdhsa_user_sgpr_kernarg_segment_ptr 1
  .amdhsa_system_sgpr_workgroup_id_x 1
.end_amdhsa_kernel
''' % (NAME, nv, (nv + 3) // 4 * 4)
    return out

def header():
    ref = open('cdna_kernels/%s.s.ref' % NAME).read().splitlines()
    h = []
    for l in ref:
        if l.startswith('; @launch'): break
        h.append(l)
    return '\n'.join(h) + '\n'

if __name__ == '__main__':
    import argparse
    ap = argparse.ArgumentParser()
    ap.add_argument('-o', default='cdna_kernels/%s.s' % NAME)
    ap.add_argument('--pol', default='nt')
    ap.add_argument('--ts', type=int, default=0)
    ap.add_argument('--trig', type=int, default=2)
    ap.add_argument('--dbg', default='')
    ap.add_argument('--tpos', type=int, default=0)
    ap.add_argument('--dfirst', action='store_true')
    ap.add_argument('--sleep', type=int, default=16)
    ap.add_argument('--w2', type=int, default=0)
    ap.add_argument('--wm', type=lambda x: int(x, 16), default=0xff)
    ap.add_argument('--xm', type=lambda x: int(x, 16), default=0xf0)
    ap.add_argument('--win', type=int, default=6)
    ap.add_argument('--head', type=int, default=6)
    ap.add_argument('--perm', type=lambda x: int(x, 16), default=0x76245103)
    a = ap.parse_args()
    pol = '' if a.pol == 'def' else a.pol.replace('_', ' ')
    open(a.o, 'w').write(gen(pol, a.ts, header(), a.trig, a.dbg, a.win, a.head, a.perm, a.sleep, a.tpos, a.dfirst, a.w2, a.wm, a.xm))
```

```python
import sys, struct
import numpy as np

NAME = 'standalone__paged_block_table_kv_radixattention__sampling'
KV_BYTES = 75497472
NS = 4
ESTR = 276 * 4
DUMP = 8 * ESTR + 512
ITEMS = 0
OWNML = 2048
CNT = OWNML + 64
MLS = CNT + 32
OWN = 2560
FD = OWN + 8 * 576
EXC = FD + 4096
LDS = FD + NS * DUMP
WS_P = 32 * 8 * 8 * 512
WS_C = WS_P + 32 * 8 * 128
WS_USED = WS_C + 32 * 128
F_DUMP, F_LAST, F_TRIG = 16, 17, 18

DOC = '''; ---------------------------------------------------------------------------------------------------
; ---------------------------------------------------------------------------------------------------
'''

def f32bits(x):
    return struct.unpack('<I', struct.pack('<f', x))[0]
C_SCALE = f32bits(128 ** -0.5 * 1.4426950408889634)
SENT_RAW = f32bits(-1e30)
SENT_MC = f32bits(float(np.float32(-1e30) * np.float32(128 ** -0.5 * 1.4426950408889634)))

def plan(bt, ctx):
    nb = [(min(c, 2048) + 15) // 16 if c > 0 else 128 for c in ctx]
    S = 0
    while S < max(nb) and all(bt[b][S] == bt[0][S] for b in range(8)): S += 1
    n = [max(x - S, 0) for x in nb]
    Q = (S + sum(n) + 7) >> 3
    own = [min(x, Q) for x in n]
    take = [Q - x for x in own]
    pool = [bt[0][j] for j in range(S)]
    for b in range(8): pool += [bt[b][S + y] for y in range(own[b], n[b])]
    key = [take[b] * 8 - b for b in range(8)]
    out = []
    for i in range(8):
        off = sum(take[b] for b in range(8) if key[b] > key[i])
        out.append((pool[off:off + take[i]], [bt[i][S + y] for y in range(own[i])]))
    return out

def usual_table():
    bt = [list(range(64)) + [64 + 64 * b + j for j in range(64)] for b in range(8)]
    ctx = [2048 - ((b + 1) * 2654435761) % 512 for b in range(8)]
    p = [f + o + [576] * 8 for f, o in plan(bt, ctx)]
    return [p[i][x] << 17 for i in range(8) for x in range(2 * NS)]

def gen(pol='nt', ts=0, header='', TRIGREM=2, dbg='', W=6, H=6, PERM=0x76245103, SLEEP=16, TPOS=0, DFIRST=False, W2=0, WM=0xff, XM=0xf0):
    L = []
    def A(s): L.append('    ' + s)
    def lab(s): L.append(s + ':')
    def C(s): L.append('    ; ' + s)
    def v(i): return 'v%d' % i
    def vr(i, n): return 'v[%d:%d]' % (i, i + n - 1)
    def srd(r): return 's[%d:%d]' % (r, r + 3)
    def srd_tail(r, nbytes):
        A('s_mov_b32 s%d, %d' % (r + 2, nbytes)); A('s_mov_b32 s%d, 0x20000' % (r + 3))
    def srd_base(r, p):
        A('s_mov_b32 s%d, s%d' % (r, p)); A('s_and_b32 s%d, s%d, 0xffff' % (r + 1, p + 1))
    def mk_srd(r, p, nbytes):
        srd_base(r, p); srd_tail(r, nbytes)
    LD = 'cas' not in dbg.split(',')
    CPF = 8 if 'cpf8' in dbg else 256 if 'cpfa' in dbg else 16
    Q3N = 3 if 'q33' in dbg else 6
    NR = 2 if 'half' in dbg else 0
    V0N = 1 if 'v01' in dbg else 2
    DPP = 'row_mask:0xf bank_mask:0xf'
    sW = 's3'
    pq, pk, pv, pbt, pctx, pout, pdbg, pws = 4, 6, 8, 10, 12, 14, 16, 18
    rK, rV, rBT, rX, rWS, rY = 20, 24, 28, 32, 36, 40
    sN, sCum = 44, 52
    sFl, sCA, sCB = 's44', 's45', 's48'
    OWNX = 's[50:51]'
    sH, sI, sH256, sS, sQ, sOff, sF, sK, sOwn, sU, sUf, sPn = ['s%d' % i for i in range(60, 72)]
    EX = 's[72:73]'; ODD = 's[74:75]'; BASE = 's[76:77]'
    selLo, selHi, sC = 's78', 's79', 's80'
    sXc, sCen = 's78', 's79'
    sOA, sOB, sDA, sDB, sT = 's81', 's82', 's83', 's84', 's85'
    sTag = sDB
    MA, MB = 's[86:87]', 's[88:89]'
    MJ = ['s[90:91]', 's[92:93]', 's[94:95]', 's[96:97]']
    sT2, sT3 = 's98', 's99'
    vKo = [8, 9]; vVo = [10, 11, 12, 13]
    vCtx, vNinf, vPm, vMr, vMc, vA1, vSo, vD, vLA, vLB = range(14, 24)
    vP, vQ, vS, vO, vK, vV, vL, vOne, vA2 = 24, 28, 36, 52, 84, 116, 148, 152, 156
    NV = 157
    vTS = 158
    def stamp(idx):
        if ts == 1 or (ts and idx == 9):
            A('s_memrealtime s[100:101]')
            A('s_waitcnt lgkmcnt(0)')
            A('v_writelane_b32 %s, s100, %d' % (v(vTS), idx))
    def stampk(off):
        if ts == 1:
            A('s_memrealtime s[100:101]')
            A('s_lshl_b32 m0, %s, 1' % sK)
            A('s_add_u32 m0, m0, %d' % (16 - 4 + off))
            A('s_waitcnt lgkmcnt(0)')
            A('v_writelane_b32 %s, s100, m0' % v(vTS))
    nw = [0]
    def window(k):
        if W2 and (WM >> k) & 1:
            nw[0] += 1
            A('s_cbranch_vccnz L_w%d' % nw[0])
            A('s_waitcnt vmcnt(%d)' % (W2 - 1))
            lab('L_w%d' % nw[0])
        A('s_waitcnt vmcnt(%d)' % (W - 1))
    def loadK(lo=0, hi=8, win=True):
        for n in range(lo, hi):
            j, hf = n >> 1, n & 1
            if win: window(n)
            A('buffer_load_dwordx4 %s, %s, %s, %s offen offset:%d %s' % (vr(vK + n * 4, 4), v(vKo[j & 1]), srd(rK), sOA if j < 2 else sOB, 128 * hf, pol))
    def loadV(lo=0, hi=8, cur=False):
        for i in range(lo, hi):
            so = (sCA if cur else sOA) if i < 4 else (sCB if cur else sOB)
            window(i)
            A('buffer_load_dwordx4 %s, %s, %s, %s offen %s' % (vr(vV + i * 4, 4), v(vVo[i & 3]), srd(rV), so, pol))
    def reset_acc():
        for r in range(32):
            A('v_mov_b32 %s, 0' % v(vO + r))
        for r in range(4):
            A('v_mov_b32 %s, 0' % v(vL + r))
        A('v_mov_b32 %s, 0x%08x' % (v(vMr), SENT_RAW))
        A('v_mov_b32 %s, 0x%08x' % (v(vMc), SENT_MC))

    lab(NAME + '_kernel')
    A('s_cmp_ge_u32 s2, 256')
    A('s_cbranch_scc1 L_end')
    A('s_load_dwordx16 s[4:19], s[0:1], 0')
    C('first round guessed from the usual table layout; checked against the real list below')
    A('s_getpc_b64 s[46:47]')
    lab('L_pc')
    A('s_and_b32 %s, s2, 56' % sT)
    A('s_lshl2_add_u32 %s, %s, L_guess-L_pc' % (sT, sT))
    A('s_load_dwordx8 s[52:59], s[46:47], %s' % sT)
    if ts:
        A('v_mov_b32 %s, 0' % v(vTS))
        A('s_memrealtime s[100:101]')
    if 'cpf' in dbg:
        C('pull the code of this kernel into L2 before the streams fill the memory queues')
        A('s_cmp_ge_u32 s2, %d' % CPF)
        A('s_cbranch_scc1 L_nocpf')
        A('v_lshlrev_b32 v2, 7, v0')
        A('v_cmp_gt_u32 vcc, L_guess-L_pc, v2')
        A('s_and_saveexec_b64 s[44:45], vcc')
        A('s_cbranch_execz L_cpf2')
        A('global_load_dword v3, v2, s[46:47]')
        lab('L_cpf2')
        A('s_mov_b64 exec, s[44:45]')
        lab('L_nocpf')
    A('v_lshrrev_b32 v1, 6, v0')
    A('v_and_b32 v0, 63, v0')
    A('v_readfirstlane_b32 %s, v1' % sW)
    C('owner i = (wg >> 3) & 7 of head h = perm(wg & 7) + 8 (wg >> 6): the eight owners of a head are neighbours')
    A('s_and_b32 %s, s2, 7' % sH)
    A('s_lshl_b32 %s, %s, 2' % (sH, sH))
    A('s_lshr_b32 %s, 0x%08x, %s' % (sH, PERM, sH))
    A('s_and_b32 %s, %s, 7' % (sH, sH))
    A('s_lshr_b32 %s, s2, 6' % sT)
    if 'crev' in dbg: A('s_xor_b32 %s, %s, 3' % (sT, sT))
    A('s_lshl3_add_u32 %s, %s, %s' % (sH, sT, sH))
    A('s_bfe_u32 %s, s2, 0x30003' % sI)
    A('s_lshl_b32 %s, %s, 8' % (sH256, sH))
    A('s_cmp_eq_u32 %s, 0' % sW)
    A('s_cbranch_scc1 L_helper')
    A('s_sub_u32 %s, %s, 1' % (sW, sW))
    A('s_mov_b32 m0, %s' % sW)
    C('lane = 16 G + 2 t + par.  K / Q: row t, bytes (2 G + par) 16 ; V: row 2 G, bytes (lane & 15) 16')
    A('v_lshrrev_b32 v2, 4, v0')
    A('v_bfe_u32 v4, v0, 1, 3')
    A('v_and_b32 v5, 1, v0')
    A('v_lshl_add_u32 %s, v4, 13, %s' % (v(vKo[0]), sH256))
    A('v_lshl_add_u32 %s, v2, 5, %s' % (v(vKo[0]), v(vKo[0])))
    A('v_lshl_add_u32 %s, v5, 4, %s' % (v(vKo[0]), v(vKo[0])))
    A('v_add_u32 %s, 0x10000, %s' % (v(vKo[1]), v(vKo[0])))
    srd_tail(rK, KV_BYTES)
    if 'qf' in dbg: srd_tail(rX, 65536)
    A('s_waitcnt lgkmcnt(0)')
    if ts: A('v_writelane_b32 %s, s100, 0' % v(vTS))
    A('s_movrels_b32 %s, s52' % sOA)
    A('s_movrels_b32 %s, s56' % sOB)
    srd_base(rK, pk)
    if 'qf' in dbg:
        srd_base(rX, pq)
        A('buffer_load_dwordx4 %s, %s, %s, 0 offen' % (vr(vQ, 4), v(vKo[0]), srd(rX)))
        A('buffer_load_dwordx4 %s, %s, %s, 0 offen offset:128' % (vr(vQ + 4, 4), v(vKo[0]), srd(rX)))
    stamp(3)
    if 'probeK' in dbg:
        A('buffer_load_dword v36, off, %s, %s nt' % (srd(rK), sOA))
        A('s_waitcnt vmcnt(0)'); stamp(6)
        mk_srd(rV, pv, KV_BYTES)
        A('buffer_load_dword v36, off, %s, %s nt' % (srd(rV), sOA))
        A('s_waitcnt vmcnt(0)'); stamp(7)
        loadK(win=False)
        A('s_waitcnt vmcnt(7)'); stamp(8)
        A('s_waitcnt vmcnt(4)'); stamp(10)
        A('s_waitcnt vmcnt(0)'); stamp(11)
    if 'probe1' in dbg:
        loadK(0, 1, win=False)
        A('s_waitcnt vmcnt(0)'); stamp(6)
        loadK(1, 2, win=False)
        A('s_waitcnt vmcnt(0)'); stamp(7)
        loadK(2, 8, win=False)
        A('s_waitcnt vmcnt(5)'); stamp(8)
        A('s_waitcnt vmcnt(3)'); stamp(10)
        A('s_waitcnt vmcnt(0)'); stamp(11)
    if 'vt1' in dbg:
        srd_base(rV, pv)
        loadK(0, 1, win=False)
        A('buffer_load_dword v36, off, %s, %s' % (srd(rV), sOA))
        loadK(1, 8, win=False)
    else:
        loadK(win=False)
    mk_srd(rX, pq, 65536); mk_srd(rY, pctx, 32); mk_srd(rV, pv, KV_BYTES)
    A('v_and_b32 v3, 15, v0')
    A('v_lshl_add_u32 %s, v2, 14, %s' % (v(vVo[0]), sH256))
    A('v_lshl_add_u32 %s, v3, 4, %s' % (v(vVo[0]), v(vVo[0])))
    A('v_add_u32 %s, 0x2000, %s' % (v(vVo[1]), v(vVo[0])))
    A('v_add_u32 %s, 0x10000, %s' % (v(vVo[2]), v(vVo[0])))
    A('v_add_u32 %s, 0x12000, %s' % (v(vVo[3]), v(vVo[0])))
    A('v_lshlrev_b32 v6, 2, v4')
    if 'vt2' in dbg:
        A('buffer_load_dword v36, off, %s, %s' % (srd(rV), sOA))
    if 'qf' not in dbg:
        A('buffer_load_dwordx4 %s, %s, %s, 0 offen' % (vr(vQ, 4), v(vKo[0]), srd(rX)))
        A('buffer_load_dwordx4 %s, %s, %s, 0 offen offset:128' % (vr(vQ + 4, 4), v(vKo[0]), srd(rX)))
    A('buffer_load_dword %s, v6, %s, 0 offen' % (v(vCtx), srd(rY)))
    A('s_mov_b32 s74, 0xaaaaaaaa'); A('s_mov_b32 s75, 0xaaaaaaaa')
    A('s_mov_b32 s76, 0x00030003'); A('s_mov_b32 s77, 0x00030003')
    A('s_mov_b32 %s, 0x05040100' % selLo); A('s_mov_b32 %s, 0x07060302' % selHi)
    A('s_mov_b32 %s, 0x%08x' % (sC, C_SCALE))
    A('v_mov_b32 %s, 0xff800000' % v(vNinf))
    A('v_mov_b32 v7, 0xffff0000')
    A('v_mov_b32 %s, 0xffff' % v(vPm))
    A('v_cndmask_b32 %s, %s, v7, %s' % (v(vPm), v(vPm), ODD))
    A('v_lshl_add_u32 v7, v2, 1, v5')
    for r in range(4):
        A('v_mov_b32 %s, 0x3f803f80' % v(vOne + r))
    C('addresses of the own dump: entry 2 w + par')
    A('s_lshl_b32 %s, %s, 1' % (sT, sW))
    A('v_add_u32 v3, %s, v5' % sT)
    A('v_lshlrev_b32 %s, 3, v3' % v(vA2))
    A('v_add_u32 %s, %d, %s' % (v(vA2), OWNML, v(vA2)))
    A('v_lshl_add_u32 v3, v3, 2, v2')
    A('v_mul_u32_u24 %s, 144, v3' % v(vA1))
    A('v_add_u32 %s, %d, %s' % (v(vA1), OWN, v(vA1)))
    A('s_lshl_b32 %s, %s, 1' % (sT2, sI))
    A('s_lshl_b64 %s, %s, %s' % (OWNX, BASE, sT2))
    C('item table address of lane k: slot 2 w + 8 (k >> 1) + (k & 1)')
    A('v_lshrrev_b32 v1, 1, v0')
    A('v_mad_u32_u24 v1, v1, %d, %s' % (2 * NS, sT))
    A('v_add_lshl_u32 v1, v1, v5, 3')
    reset_acc()
    def setv():
        if W2:
            A('s_and_b32 %s, s2, 7' % sT3)
            A('s_bitcmp1_b32 0x%x, %s' % (XM, sT3))
            A('s_cselect_b64 vcc, -1, 0')
    setv()
    A('s_mov_b32 %s, 0' % sK)
    if 'v0' in dbg:
        for i in range(V0N):
            A('buffer_load_dwordx4 %s, %s, %s, %s offen %s' % (vr(vV + i * 4, 4), v(vVo[i & 3]), srd(rV), sOA if i < 4 else sOB, pol))
        loadV(V0N, H)
    elif 'noq3' not in dbg:
        for i in range(H):
            A('s_waitcnt vmcnt(%d)' % (W - 1 + (3 if i < Q3N else 0)))
            A('buffer_load_dwordx4 %s, %s, %s, %s offen %s' % (vr(vV + i * 4, 4), v(vVo[i & 3]), srd(rV), sOA if i < 4 else sOB, pol))
    else:
        loadV(0, H)
    stamp(2)
    A('s_barrier')
    stamp(1)
    A('ds_read_b64 %s, v1 offset:%d' % (vr(vSo, 2), ITEMS))
    A('s_waitcnt vmcnt(%d)' % H)
    C('ctx fix-up per lane; ctx <= 0 masks every key in the reference, i.e. uniform weights: q = 0, ctx = 2048')
    A('v_cmp_lt_i32 vcc, 0, %s' % v(vCtx))
    A('v_mov_b32 v2, 0x800')
    A('v_min_i32 %s, %s, v2' % (v(vCtx), v(vCtx)))
    A('v_cndmask_b32 %s, v2, %s, vcc' % (v(vCtx), v(vCtx)))
    for r in range(8):
        A('v_cndmask_b32 %s, 0, %s, vcc' % (v(vQ + r), v(vQ + r)))
    A('v_sub_u32 %s, %s, v7' % (v(vCtx), v(vCtx)))
    setv()
    A('s_waitcnt lgkmcnt(0)')
    A('v_readlane_b32 %s, %s, 0' % (sT, v(vSo)))
    A('v_readlane_b32 %s, %s, 1' % (sT2, v(vSo)))
    A('s_nop 1')
    A('s_xor_b32 s46, %s, %s' % (sT, sOA))
    A('s_xor_b32 s47, %s, %s' % (sT2, sOB))
    A('s_or_b32 s46, s46, s47')
    A('s_cbranch_scc1 L_redo')
    lab('L_loop')
    A('s_add_u32 %s, %s, 1' % (sT, sK))
    A('s_add_u32 %s, %s, 2' % (sT2, sK))
    A('s_add_u32 %s, %s, 3' % (sT3, sK))
    A('s_mov_b32 %s, %s' % (sCA, sOA))
    A('s_mov_b32 %s, %s' % (sCB, sOB))
    A('v_readlane_b32 %s, %s, %s' % (sDA, v(vD), sK))
    A('v_readlane_b32 %s, %s, %s' % (sDB, v(vD), sT))
    A('v_readlane_b32 %s, %s, %s' % (sOA, v(vSo), sT2))
    A('v_readlane_b32 %s, %s, %s' % (sOB, v(vSo), sT3))
    A('s_mov_b32 %s, %s' % (sK, sT2))
    A('s_mov_b32 %s, %s' % (sFl, sDA))
    def trigger():
        C('tell the helper that the local stream is close to its end')
        A('s_bitcmp0_b32 %s, %d' % (sFl, F_TRIG))
        A('s_cbranch_scc1 L_nt')
        A('v_mov_b32 v1, %d' % CNT)
        A('v_mov_b32 v4, 1')
        A('ds_write_b32 v1, v4 offset:4')
        lab('L_nt')
    if TPOS == 0: trigger()
    C('validity of the 4 x 8 keys per column: member of the block and position < ctx')
    for (d, m, lim) in ((sDA, MA, vLA), (sDB, MB, vLB)):
        A('s_and_b32 %s, %s, 7' % (sT, d))
        A('s_lshl_b32 %s, %s, 1' % (sT, sT))
        A('s_lshl_b64 %s, %s, %s' % (m, BASE, sT))
        A('s_bitcmp1_b32 %s, 3' % d)
        A('s_cselect_b64 %s, -1, %s' % (m, m))
        A('s_and_b32 %s, %s, 0x400007f0' % (d, d))
        A('v_subrev_u32 %s, %s, %s' % (v(lim), d, v(vCtx)))
        A('v_cndmask_b32 %s, -1, %s, %s' % (v(lim), v(lim), m))
    A('v_cmp_lt_i32 %s, 0, %s' % (MJ[0], v(vLA)))
    A('v_cmp_lt_i32 %s, 8, %s' % (MJ[1], v(vLA)))
    A('v_cmp_lt_i32 %s, 0, %s' % (MJ[2], v(vLB)))
    A('v_cmp_lt_i32 %s, 8, %s' % (MJ[3], v(vLB)))
    stampk(0)
    A('s_waitcnt vmcnt(%d)' % H)
    stampk(1)
    for hf in range(2):
        for j in range(4):
            d = vr(vS + 4 * j, 4)
            A('v_mfma_f32_16x16x32_bf16 %s, %s, %s, %s' % (d, vr(vK + (j * 2 + hf) * 4, 4), vr(vQ + 4 * hf, 4), '0' if hf == 0 else d))
    tail = list(range(H, 8))
    def vtail(last=False):
        if tail:
            i = tail.pop(0); loadV(i, i + 1, cur=True)
        while last and tail:
            i = tail.pop(0); loadV(i, i + 1, cur=True)
    vtail()
    A('s_nop 4')
    D = lambda j, r: v(vS + 4 * j + r)
    qp = 'quad_perm:[1,0,3,2] ' + DPP
    C('rows and columns both carry the chunk parity: add the two diagonal halves; even lane key 2 G, odd lane key 2 G + 1')
    for j in range(4):
        A('v_add_f32_dpp %s, %s, %s %s' % (D(j, 0), D(j, 1), D(j, 0), qp))
        A('v_add_f32_dpp %s, %s, %s %s' % (D(j, 3), D(j, 2), D(j, 3), qp))
    for j in range(4):
        A('v_cndmask_b32 %s, %s, %s, %s' % (D(j, 0), D(j, 0), D(j, 3), ODD))
    for j in range(4):
        A('v_cndmask_b32 %s, %s, %s, %s' % (D(j, 0), v(vNinf), D(j, 0), MJ[j]))
    C('running maximum of the column (over the four lane groups)')
    A('v_max3_f32 v1, %s, %s, %s' % (D(0, 0), D(1, 0), D(2, 0)))
    A('v_max3_f32 v1, v1, %s, %s' % (D(3, 0), v(vMr)))
    A('v_mov_b32 v2, v1')
    A('s_nop 1')
    A('v_permlane16_swap_b32 v2, v1')
    A('v_max_f32 v1, v2, v1')
    A('v_mov_b32 v2, v1')
    A('s_nop 1')
    A('v_permlane32_swap_b32 v2, v1')
    A('v_max_f32 %s, v2, v1' % v(vMr))
    vtail()
    A('v_mul_f32 v1, %s, %s' % (sC, v(vMr)))
    A('v_sub_f32 v2, %s, v1' % v(vMc))
    A('v_mov_b32 %s, v1' % v(vMc))
    A('v_exp_f32 v2, v2')
    for j in range(4):
        A('v_fma_f32 %s, %s, %s, -v1' % (D(j, 1), D(j, 0), sC))
    for j in range(4):
        A('v_exp_f32 %s, %s' % (D(j, 1), D(j, 1)))
    for r in range(0, 8, 2):
        A('v_pk_mul_f32 %s, %s, v[2:3] op_sel_hi:[1,0]' % (vr(vO + r, 2), vr(vO + r, 2)))
    for j in range(4):
        A('v_cvt_pk_bf16_f32 %s, %s, %s' % (v(vP + j), D(j, 1), D(j, 1)))
    A('v_mul_f32 %s, %s, v2' % (v(vL), v(vL)))
    for j in range(4):
        A('v_and_b32 %s, %s, %s' % (v(vP + j), v(vPm), v(vP + j)))
    vtail()
    for r in range(8, 32, 2):
        A('v_pk_mul_f32 %s, %s, v[2:3] op_sel_hi:[1,0]' % (vr(vO + r, 2), vr(vO + r, 2)))
    C('denominator: all-ones rows times P')
    A('v_mfma_f32_16x16x32_bf16 %s, %s, %s, %s' % (vr(vL, 4), vr(vOne, 4), vr(vP, 4), vr(vL, 4)))
    vtail(True)
    if TPOS == 1: trigger()
    stampk(2)
    A('s_bitcmp0_b32 %s, %d' % (sFl, F_LAST))
    A('s_cbranch_scc0 L_k1')
    loadK(0, H)
    A('s_waitcnt vmcnt(%d)' % H)
    A('s_branch L_k2')
    lab('L_k1')
    A('s_waitcnt vmcnt(0)')
    lab('L_k2')
    if TPOS == 2: trigger()
    stampk(3)
    if ts == 1 or TPOS == 2: A('s_bitcmp0_b32 %s, %d' % (sFl, F_LAST))
    def perms(e):
        tb = vS + 4 * (e % 3)
        w = e >> 1
        for u in range(4):
            A('v_perm_b32 %s, %s, %s, %s' % (v(tb + u), v(vV + (2 * u + 1) * 4 + w), v(vV + (2 * u) * 4 + w), selHi if e & 1 else selLo))
    def pv_(e):
        tb = vS + 4 * (e % 3)
        A('v_mfma_f32_16x16x32_bf16 %s, %s, %s, %s' % (vr(vO + 4 * e, 4), vr(tb, 4), vr(vP, 4), vr(vO + 4 * e, 4)))
    ktail = list(range(H, 8))
    def kt():
        if ktail:
            n = ktail.pop(0)
            A('s_cbranch_scc0 L_kt%d' % n)
            loadK(n, n + 1)
            lab('L_kt%d' % n)
    C('V^T fragments by an in-lane 8 x 8 transpose; O^T tile e holds d = 32 G + 8 r + e')
    perms(0)
    for e in range(1, 8):
        perms(e)
        pv_(e - 1)
        if e in (1, 4): kt()
    A('s_nop 1')
    pv_(7)
    def next_loads():
        A('s_cbranch_scc0 L_v2')
        if ktail: loadK(ktail[0], 8)
        loadV(0, H)
        lab('L_v2')
    if not DFIRST: next_loads()
    A('s_bitcmp1_b32 %s, %d' % (sFl, F_DUMP))
    A('s_cbranch_scc1 L_dump')
    lab('L_nodump')
    if DFIRST:
        A('s_bitcmp0_b32 %s, %d' % (sFl, F_LAST))
        next_loads()
    A('s_bitcmp0_b32 %s, %d' % (sFl, F_LAST))
    A('s_cbranch_scc1 L_loop')
    stamp(5)
    C('own dump (lanes of column i), in d order')
    A('s_mov_b64 exec, %s' % OWNX)
    A('ds_write2_b32 %s, %s, %s offset0:0 offset1:1' % (v(vA2), v(vMc), v(vL)))
    for e in range(0, 8, 2):
        for r in range(4):
            A('ds_write2_b32 %s, %s, %s offset0:%d offset1:%d' % (v(vA1), v(vO + 4 * e + r), v(vO + 4 * e + 4 + r), 8 * r + e, 8 * r + e + 1))
    A('s_waitcnt lgkmcnt(0)')
    A('s_barrier')
    if ts:
        A('s_mov_b64 exec, -1')
        A('s_branch L_tsout')
    A('s_endpgm')
    C('hand the accumulators to the helper after the last foreign unit of this wave')
    lab('L_dump')
    A('s_mul_i32 %s, %s, %d' % (sT, sW, DUMP))
    A('v_lshrrev_b32 v1, 4, v0')
    A('v_add_lshl_u32 v1, v1, v0, 4')
    A('v_add_u32 v1, %s, v1' % sT)
    A('s_add_u32 %s, %s, %d' % (sT, sT, FD + 8 * ESTR))
    A('v_lshl_add_u32 v2, v0, 3, %s' % sT)
    A('s_nop 4')
    for e in range(8):
        A('ds_write_b128 v1, %s offset:%d' % (vr(vO + 4 * e, 4), FD + ESTR * e))
    A('ds_write2_b32 v2, %s, %s offset0:0 offset1:1' % (v(vMc), v(vL)))
    A('v_mov_b32 v1, %d' % CNT)
    A('v_lshlrev_b32 v2, %s, 1' % sW)
    A('s_waitcnt lgkmcnt(0)')
    A('s_mov_b64 exec, 1')
    A('ds_or_b32 v1, v2')
    A('s_mov_b64 exec, -1')
    reset_acc()
    stamp(4)
    A('s_branch L_nodump')
    lab('L_redo')
    C('the guess was wrong: fetch the real first unit')
    A('s_waitcnt vmcnt(0)')
    A('s_mov_b32 %s, %s' % (sOA, sT))
    A('s_mov_b32 %s, %s' % (sOB, sT2))
    loadK(win=False)
    loadV(0, H)
    A('s_branch L_loop')
    lab('L_helper')
    vBT = 116; vNon = 132
    A('s_memrealtime s[48:49]')
    if 'noprio' not in dbg: A('s_setprio 3')
    if ts: A('s_mov_b32 %s, 7' % sW)
    A('v_lshlrev_b32 v1, 3, v0')
    srd_tail(rBT, 4096); srd_tail(rX, 32)
    A('v_and_b32 v18, 7, v0')
    A('v_lshrrev_b32 v19, 3, v0')
    A('v_lshlrev_b32 v6, 2, v18')
    A('v_lshlrev_b32 v7, 2, v19')
    A('v_mov_b32 v2, %d' % CNT)
    A('v_mov_b32 v4, 0')
    A('v_mov_b32 v5, 0')
    A('ds_write_b64 v2, v[4:5]')
    A('s_waitcnt lgkmcnt(0)')
    if ts: A('v_writelane_b32 %s, s100, 0' % v(vTS))
    srd_base(rBT, pbt); srd_base(rX, pctx)
    A('buffer_load_dword v20, v6, %s, 0 offen' % srd(rX))
    A('buffer_load_dword v21, v7, %s, 0 offen' % srd(rX))
    for b in range(8):
        A('buffer_load_dwordx2 %s, v1, %s, 0 offen offset:%d' % (vr(vBT + 2 * b, 2), srd(rBT), 512 * b))
    mk_srd(rY, pdbg, 256)
    if LD:
        C('tag of this launch for this head: owner 0 picks it and leaves it in d_debug (which starts at zero)')
        A('s_mul_i32 s48, s48, 0x9e3779b1')
        A('s_or_b32 %s, s48, 1' % sTag)
        A('s_lshl_b32 %s, %s, %d' % (sCen, sH, 2 if 'ld4' in dbg else 3))
        A('s_cmp_lg_u32 %s, 0' % sI)
        A('s_cbranch_scc1 L_notag')
        A('v_mov_b32 %s, %s' % (v(vNon), sTag))
        A('s_mov_b64 exec, 1')
        A('buffer_store_dword %s, off, %s, %s%s' % (v(vNon), srd(rY), sCen, '' if 'stp' in dbg else ' sc1'))
        A('s_mov_b64 exec, -1')
        A('s_waitcnt vmcnt(9)')
        lab('L_notag')
    else:
        C('tag of this launch for this head: first arriver wins (d_debug starts at zero)')
        A('s_mul_i32 s48, s48, 0x9e3779b1')
        A('s_or_b32 s48, s48, 1')
        A('v_mov_b32 %s, s48' % v(vNon))
        A('v_mov_b32 %s, 0' % v(vNon + 1))
        A('s_lshl_b32 %s, %s, 2' % (sT3, sH))
        A('s_mov_b64 exec, 1')
        if 'noatom' in dbg: A('s_mov_b32 s48, 0x1234567'); A('buffer_load_dword v132, off, %s, %s' % (srd(rY), sT3))
        else: A('buffer_atomic_cmpswap %s, off, %s, %s %ssc0 sc1' % (vr(vNon, 2), srd(rY), sT3, 'offset:128 ' if 'dd' in dbg else ''))
        A('s_mov_b64 exec, -1')
        A('s_mov_b32 %s, s48' % sTag)
    A('v_add_u32 v1, %d, v1' % FD)
    RED = ('quad_perm:[1,0,3,2]', 'quad_perm:[2,3,0,1]', 'row_half_mirror')
    def red8(op, r):
        for ctl in RED:
            A('s_nop 1')
            A('%s_dpp %s, %s, %s %s %s' % (op, r, r, r, ctl, DPP))
    A('v_mov_b32 v22, 0x800')
    A('s_waitcnt vmcnt(%d)' % (8 if LD else 9))
    C('lane = 8 p + b.  ctx -> blocks (ctx <= 0 acts as 2048; clamp to 2048): v20 by b, v21 by p')
    A('v_cmp_lt_i32 %s, 0, v20' % MA)
    A('v_cmp_lt_i32 %s, 0, v21' % MB)
    A('v_min_i32 v20, v20, v22')
    A('v_min_i32 v21, v21, v22')
    A('v_cndmask_b32 v20, v22, v20, %s' % MA)
    A('v_cndmask_b32 v21, v22, v21, %s' % MB)
    for r in ('v20', 'v21'):
        A('v_add_u32 %s, 15, %s' % (r, r))
        A('v_lshrrev_b32 %s, 4, %s' % (r, r))
    A('v_mov_b32 v23, v20')
    red8('v_max_u32', 'v23')
    A('s_nop 0')
    A('v_readfirstlane_b32 %s, v23' % sS)
    stamp(1)
    if LD:
        A('s_cmp_lg_u32 %s, 0' % sI)
        A('s_cbranch_scc0 L_w1')
        A('s_waitcnt vmcnt(0)')
        lab('L_w1')
    A('s_waitcnt vmcnt(1)')
    stamp(17)
    for b in range(8):
        A('ds_write_b64 v1, %s offset:%d' % (vr(vBT + 2 * b, 2), 512 * b))
    C('S = length of the prefix of table columns on which all eight sequences agree')
    for st in range(2):
        r = lambda b: v(vBT + 2 * b + st)
        mx, mn = v(8 + 2 * st), v(8 + 2 * st + 1)
        A('v_max3_u32 %s, %s, %s, %s' % (mx, r(0), r(1), r(2)))
        A('v_min3_u32 %s, %s, %s, %s' % (mn, r(0), r(1), r(2)))
        A('v_max3_u32 %s, %s, %s, %s' % (mx, mx, r(3), r(4)))
        A('v_min3_u32 %s, %s, %s, %s' % (mn, mn, r(3), r(4)))
        A('v_max3_u32 %s, %s, %s, %s' % (mx, mx, r(5), r(6)))
        A('v_min3_u32 %s, %s, %s, %s' % (mn, mn, r(5), r(6)))
        A('v_max_u32 %s, %s, %s' % (mx, mx, r(7)))
        A('v_min_u32 %s, %s, %s' % (mn, mn, r(7)))
        A('v_cmp_ne_u32 %s, %s, %s' % ((MA, MB)[st], mx, mn))
    A('s_nop 1')
    A('s_ff1_i32_b64 %s, %s' % (sT, MA))
    A('s_ff1_i32_b64 %s, %s' % (sT2, MB))
    A('s_lshl_b32 %s, %s, 1' % (sT, sT))
    A('s_lshl1_add_u32 %s, %s, 1' % (sT2, sT2))
    A('s_min_u32 %s, %s, %s' % (sS, sS, sT))
    A('s_min_u32 %s, %s, %s' % (sS, sS, sT2))
    C('private blocks n, quota Q = ceil((S + sum n) / 8)')
    for r in ('v20', 'v21'):
        A('v_subrev_u32 %s, %s, %s' % (r, sS, r))
        A('v_max_i32 %s, 0, %s' % (r, r))
    A('v_mov_b32 v24, v20')
    red8('v_add_u32', 'v24')
    A('v_add3_u32 v24, v24, %s, 7' % sS)
    A('v_lshrrev_b32 v25, 3, v24')
    A('v_min_u32 v26, v20, v25')
    A('v_min_u32 v27, v21, v25')
    A('v_sub_u32 v24, v25, v26')
    A('v_sub_u32 v25, v25, v27')
    A('v_sub_u32 v20, v20, v26')
    C('pool = shared blocks, then the excess; takers are served in falling order of spare room')
    A('v_lshlrev_b32 v22, 3, v24')
    A('v_lshlrev_b32 v23, 3, v25')
    A('v_sub_u32 v22, v22, v18')
    A('v_sub_u32 v23, v23, v19')
    A('v_cmp_gt_i32 %s, v22, v23' % MA)
    A('v_cmp_lt_u32 %s, v18, v19' % MB)
    A('v_lshlrev_b32 v23, 16, v20')
    A('v_cndmask_b32 v22, 0, v24, %s' % MA)
    A('v_cndmask_b32 v23, 0, v23, %s' % MB)
    A('v_or_b32 v22, v22, v23')
    red8('v_add_u32', 'v22')
    A('v_lshlrev_b32 v21, 5, v18')
    A('v_lshrrev_b32 v23, 16, v22')
    A('v_and_b32 v22, 0xffff, v22')
    A('ds_bpermute_b32 v28, v21, v23')
    A('v_readlane_b32 %s, v23, 56' % sT)
    A('v_readlane_b32 %s, v20, 7' % sT2)
    A('s_lshl_b32 %s, %s, 3' % (sT3, sI))
    A('s_add_u32 %s, %s, %s' % (sPn, sT, sT2))
    A('s_add_u32 %s, %s, %s' % (sPn, sPn, sS))
    A('v_sub_u32 v29, %s, v22' % sPn)
    A('v_med3_i32 v29, v29, 0, v25')
    A('v_readlane_b32 %s, v22, %s' % (sOff, sT3))
    A('v_readlane_b32 %s, v27, %s' % (sOwn, sT3))
    A('v_readlane_b32 %s, v29, %s' % (sF, sT3))
    C('excess map: entry e of the excess = table index 128 b + j of that block; lane 8 t + b writes step t of row b')
    A('v_lshl_add_u32 v30, v18, 7, v26')
    A('v_add3_u32 v30, v30, %s, v19' % sS)
    A('v_mov_b32 v31, v19')
    A('s_waitcnt lgkmcnt(0)')
    A('v_add_lshl_u32 v32, v28, v19, 2')
    lab('L_exc')
    A('v_cmp_lt_u32 vcc, v31, v20')
    A('v_add_u32 v31, 8, v31')
    A('s_mov_b64 exec, vcc')
    A('ds_write_b32 v32, v30 offset:%d' % EXC)
    A('s_mov_b64 exec, -1')
    A('v_cmp_lt_u32 vcc, v31, v20')
    A('v_add_u32 v30, 8, v30')
    A('v_add_u32 v32, 32, v32')
    A('s_cbranch_vccnz L_exc')
    A('s_add_u32 %s, %s, %s' % (sU, sF, sOwn))
    if ts:
        for k, r in ((12, sS), (13, sOff), (14, sF), (15, sU)):
            A('v_writelane_b32 %s, %s, %d' % (v(vTS), r, k))
    A('v_mov_b32 v1, v0')
    A('s_lshl_b32 %s, %s, 7' % (sT, sI))
    A('s_add_u32 %s, %s, %s' % (sT, sT, sS))
    A('v_mov_b32 v12, %s' % sT)
    A('v_mov_b32 v13, 576')
    A('s_mov_b32 %s, 3' % sK)
    stamp(19)
    lab('L_items')
    C('table slot x = 8 R + 2 w + s holds list item 8 R + 4 s + w : (byte offset, 16 j | code | flags)')
    A('v_and_b32 v10, -8, v1')
    A('v_bfe_u32 v2, v1, 1, 2')
    A('v_add_u32 v10, v10, v2')
    A('v_and_b32 v2, 1, v1')
    A('v_lshl_add_u32 v11, v2, 2, v10')
    A('v_add_u32 v2, %s, v11' % sOff)
    A('v_subrev_u32 v3, %s, v2' % sS)
    A('v_and_b32 v4, 0x3ff, v3')
    A('v_lshlrev_b32 v4, 2, v4')
    A('ds_read_b32 v4, v4 offset:%d' % EXC)
    A('v_cmp_gt_i32 %s, 0, v3' % MJ[0])
    A('v_subrev_u32 v6, %s, v11' % sF)
    A('v_cmp_gt_u32 %s, %s, v11' % (MJ[1], sF))
    A('v_cmp_gt_u32 %s, %s, v6' % (MJ[3], sOwn))
    A('v_add_u32 v6, v12, v6')
    A('s_or_b64 %s, %s, %s' % (MJ[3], MJ[3], MJ[1]))
    A('s_and_b64 %s, %s, %s' % (MJ[2], MJ[0], MJ[1]))
    A('s_waitcnt lgkmcnt(0)')
    A('v_cndmask_b32 v4, v4, v2, %s' % MJ[0])
    A('v_cndmask_b32 v4, v6, v4, %s' % MJ[1])
    A('v_bfe_u32 v3, v4, 7, 3')
    A('v_and_b32 v5, 127, v4')
    A('v_cndmask_b32 v3, v3, 8, %s' % MJ[2])
    A('v_and_b32 v4, 0x3ff, v4')
    A('v_lshlrev_b32 v4, 2, v4')
    A('ds_read_b32 v8, v4 offset:%d' % FD)
    A('v_lshl_add_u32 v9, v5, 4, v3')
    A('v_mov_b32 v6, 0x40000000')
    A('v_cndmask_b32 v9, v6, v9, %s' % MJ[3])
    A('v_add_u32 v3, 8, v10')
    A('v_add_u32 v4, %d, v10' % (8 * TRIGREM))
    A('v_cmp_le_u32 %s, %s, v3' % (MJ[0], sU))
    A('v_cmp_le_u32 %s, %s, v4' % (MJ[1], sU))
    A('v_cmp_le_u32 %s, %s, v3' % (MJ[2], sF))
    A('v_cmp_gt_u32 vcc, %s, v10' % sF)
    A('s_and_b64 %s, %s, vcc' % (MJ[2], MJ[2]))
    for m, f in ((MJ[0], F_LAST), (MJ[1], F_TRIG), (MJ[2], F_DUMP)):
        A('v_or_b32 v2, 0x%x, v9' % (1 << f))
        A('v_cndmask_b32 v9, v9, v2, %s' % m)
    A('v_lshlrev_b32 v2, 3, v1')
    A('v_add_u32 v1, 64, v1')
    A('s_waitcnt lgkmcnt(0)')
    A('v_cndmask_b32 v8, v13, v8, %s' % MJ[3])
    A('v_lshlrev_b32 v8, 17, v8')
    A('ds_write_b64 v2, v[8:9] offset:%d' % ITEMS)
    A('s_add_u32 %s, %s, 7' % (sT, sU))
    A('v_readfirstlane_b32 %s, v1' % sT2)
    A('s_sub_u32 %s, %s, 1' % (sK, sK))
    A('s_cbranch_scc1 L_itdone')
    A('s_cmp_lt_u32 %s, %s' % (sT2, sT))
    A('s_cbranch_scc1 L_items')
    lab('L_itdone')
    stamp(20)
    A('s_waitcnt lgkmcnt(0)')
    A('s_barrier')
    stamp(11)
    if 'nopub' in dbg:
        A('s_barrier')
        if ts: A('s_branch L_tsout')
        A('s_endpgm')
    mk_srd(rWS, pws, WS_USED)
    mk_srd(rX, pout, 65536)
    C('row (producer p, column b) is published iff p holds shared blocks or excess of b, p != b')
    A('v_add_u32 v28, %s, v28' % sS)
    A('v_add_u32 v30, v22, v29')
    A('v_cmp_gt_u32 %s, v30, v28' % MA)
    A('v_add_u32 v28, v28, v20')
    A('v_cmp_lt_u32 %s, 0, v20' % MB)
    A('s_and_b64 %s, %s, %s' % (MA, MA, MB))
    A('v_cmp_lt_u32 %s, v22, v28' % MB)
    A('s_and_b64 %s, %s, %s' % (MA, MA, MB))
    A('v_cmp_gt_u32 %s, %s, v22' % (MB, sS))
    A('s_or_b64 %s, %s, %s' % (MA, MA, MB))
    A('v_cmp_lt_u32 %s, 0, v29' % MB)
    A('s_and_b64 %s, %s, %s' % (MA, MA, MB))
    A('v_cmp_ne_u32 %s, v18, v19' % MB)
    A('s_and_b64 %s, %s, %s' % (EX, MA, MB))
    if LD:
        A('s_cmp_eq_u32 %s, 0' % sI)
        A('s_cbranch_scc1 L_tagok')
        A('s_mov_b32 %s, 0' % sK)
        A('s_mov_b64 exec, 1')
        if 'ldp' in dbg:
            A('buffer_load_dword %s, off, %s, %s' % (v(vNon), srd(rY), sCen))
            A('s_branch L_tag1')
        lab('L_tag')
        A('buffer_load_dword %s, off, %s, %s sc1' % (v(vNon), srd(rY), sCen))
        lab('L_tag1')
        A('s_add_u32 %s, %s, 1' % (sK, sK))
        A('s_waitcnt vmcnt(0)')
        A('v_readfirstlane_b32 %s, %s' % (sTag, v(vNon)))
        A('s_nop 1')
        A('s_cmp_lg_u32 %s, 0' % sTag)
        A('s_cbranch_scc1 L_tagin')
        A('s_cmp_ge_u32 %s, 0x4000' % sK)
        A('s_cbranch_scc1 L_tagin')
        A('s_sleep 32')
        A('s_branch L_tag')
        lab('L_tagin')
        A('s_mov_b64 exec, -1')
        if ts == 1: A('v_writelane_b32 %s, %s, 22' % (v(vTS), sK))
        stamp(18)
        lab('L_tagok')
    else:
        A('s_waitcnt vmcnt(0)')
        A('v_readfirstlane_b32 %s, %s' % (sT, v(vNon)))
        A('s_nop 1')
        A('s_cmp_eq_u32 %s, 0' % sT)
        A('s_cselect_b32 %s, %s, %s' % (sTag, sTag, sT))
    A('v_mov_b32 %s, %s' % (v(vNon), sTag))
    C('census: every owner of this head notes (tag, XCD) in its slot of one line')
    A('s_getreg_b32 %s, hwreg(HW_REG_XCC_ID, 0, 4)' % sXc)
    A('s_lshl_b32 %s, %s, 7' % (sCen, sH))
    A('s_add_u32 %s, %s, %d' % (sCen, sCen, WS_C))
    A('s_lshl3_add_u32 %s, %s, %s' % (sT, sI, sCen))
    A('v_mov_b32 %s, %s' % (v(vNon + 1), sXc))
    A('s_mov_b64 exec, 1')
    A('buffer_store_dwordx2 %s, off, %s, %s' % (vr(vNon, 2), srd(rWS), sT))
    A('s_mov_b64 exec, -1')
    hA, hM, hL, hW, hX, hY = 52, 68, 72, 76, 84, 116
    A('v_lshrrev_b32 v1, 5, v0')
    A('v_and_b32 v2, 31, v0')
    A('s_cmp_eq_u32 %s, 0' % sF)
    A('s_cbranch_scc1 L_nopub')
    C('merge of the foreign dumps: register group q, half wave hf -> column 2 q + hf, lane c -> d = 4 c .. 4 c + 3')
    for r in range(16):
        A('v_mov_b32 %s, 0' % v(hA + r))
    for q in range(4):
        A('v_mov_b32 %s, 0x%08x' % (v(hM + q), SENT_MC))
        A('v_mov_b32 %s, 0' % v(hL + q))
    A('v_lshrrev_b32 v3, 3, v2')
    A('v_lshlrev_b32 v4, 4, v3')
    A('v_lshl_add_u32 v4, v1, 1, v4')
    A('v_lshlrev_b32 v9, 4, v1')
    A('v_add_lshl_u32 v4, v4, v3, 4')
    A('v_bfe_u32 v5, v2, 1, 2')
    A('v_lshl_add_u32 v4, v5, 2, v4')
    A('v_and_b32 v5, 1, v2')
    A('v_mul_u32_u24 v5, %d, v5' % (4 * ESTR))
    A('v_add_u32 v5, v4, v5')
    A('v_add_u32 v5, %d, v5' % FD)
    for k in range(1, 4):
        A('v_add_u32 v%d, %d, v5' % (5 + k, ESTR * k))
    A('s_min_u32 %s, %s, %d' % (sUf, sF, NS))
    C('fixed order (last wave first: it has the fewest foreign units)')
    A('v_mov_b32 v10, %d' % CNT)
    lab('L_next')
    A('s_sub_u32 %s, %s, 1' % (sUf, sUf))
    lab('L_spin1')
    A('ds_read_b32 v11, v10')
    A('s_waitcnt lgkmcnt(0)')
    A('v_readfirstlane_b32 %s, v11' % sT)
    A('s_nop 1')
    A('s_bitcmp1_b32 %s, %s' % (sT, sUf))
    A('s_cbranch_scc1 L_mrg')
    A('s_sleep %d' % (12 if 'ls' in dbg else 3))
    A('s_branch L_spin1')
    lab('L_mrg')
    stamp(3)
    A('s_cmp_lg_u32 %s, 0' % sUf)
    A('s_cbranch_scc1 L_nocen')
    A('v_lshlrev_b32 v138, 3, v0')
    A('s_mov_b64 exec, 0xff')
    A('buffer_load_dwordx2 v[136:137], v138, %s, %s offen%s' % (srd(rWS), sCen, '' if 'cenp' in dbg else ' sc1'))
    A('s_mov_b64 exec, -1')
    lab('L_nocen')
    A('s_mul_i32 %s, %s, %d' % (sT, sUf, DUMP))
    for k in range(5):
        A('v_add_u32 v%d, %s, v%d' % (13 + k, sT, 5 + k))
    for q in range(4):
        A('ds_read_b128 %s, v17 offset:%d' % (vr(hY + 4 * q, 4), FD + 8 * ESTR + 32 * q))
    for q in range(4):
        for k in range(4):
            A('ds_read2_b32 %s, v%d offset0:%d offset1:%d' % (vr(hX + 8 * q + 2 * k, 2), 13 + k, 16 * q, 16 * q + 4))
    A('s_waitcnt lgkmcnt(15)')
    for q in range(4):
        m0, l0, m1, l1 = [v(hY + 4 * q + t) for t in range(4)]
        A('v_max3_f32 v12, %s, %s, %s' % (v(hM + q), m0, m1))
        A('v_sub_f32 %s, %s, v12' % (v(hW + q), v(hM + q)))
        A('v_sub_f32 %s, %s, v12' % (m0, m0))
        A('v_sub_f32 %s, %s, v12' % (m1, m1))
        A('v_exp_f32 %s, %s' % (v(hW + q), v(hW + q)))
        A('v_exp_f32 %s, %s' % (m0, m0))
        A('v_exp_f32 %s, %s' % (m1, m1))
        A('v_mov_b32 %s, v12' % v(hM + q))
        A('v_mul_f32 %s, %s, %s' % (v(hL + q), v(hL + q), v(hW + q)))
        A('v_fmac_f32 %s, %s, %s' % (v(hL + q), m0, l0))
        A('v_fmac_f32 %s, %s, %s' % (v(hL + q), m1, l1))
        for k in range(4):
            A('v_mul_f32 %s, %s, %s' % (v(hA + 4 * q + k), v(hA + 4 * q + k), v(hW + q)))
    A('s_waitcnt lgkmcnt(0)')
    for q in range(4):
        for k in range(4):
            A('v_fmac_f32 %s, %s, %s' % (v(hA + 4 * q + k), v(hY + 4 * q), v(hX + 8 * q + 2 * k)))
            A('v_fmac_f32 %s, %s, %s' % (v(hA + 4 * q + k), v(hY + 4 * q + 2), v(hX + 8 * q + 2 * k + 1)))
    A('s_cmp_lg_u32 %s, 0' % sUf)
    A('s_cbranch_scc1 L_next')
    stamp(2)
    C('the low byte of every published float carries one byte of the tag')
    for k in range(4):
        A('s_mov_b32 %s, 0x%08x' % (sT, 0x07060500 + k))
        for q in range(4):
            A('v_perm_b32 %s, %s, %s, %s' % (v(hA + 4 * q + k), v(hA + 4 * q + k), v(vNon), sT))
    A('v_lshlrev_b32 v6, 3, v1')
    A('v_add_u32 v6, %d, v6' % MLS)
    for q in range(4):
        A('ds_write2_b32 v6, %s, %s offset0:%d offset1:%d' % (v(hM + q), v(hL + q), 4 * q, 4 * q + 1))
    C('publish the rows (h, b, i) that somebody waits for, and (m, l) of the eight columns as one line')
    A('s_lshl_b32 %s, %s, 3' % (sT, sI))
    A('s_lshr_b64 %s, %s, %s' % (MA, EX, sT))
    A('v_lshrrev_b32 v4, v1, s86')
    A('v_lshlrev_b32 v5, 12, v1')
    A('v_lshl_add_u32 v5, v2, 4, v5')
    A('v_mov_b32 v9, 0x40000000')
    A('s_lshl_b32 %s, %s, 6' % (sT, sH))
    A('s_add_u32 %s, %s, %s' % (sT, sT, sI))
    A('s_lshl_b32 %s, %s, 9' % (sT, sT))
    A('s_lshl_b32 %s, %s, 3' % (sT3, sH))
    A('s_add_u32 %s, %s, %s' % (sT3, sT3, sI))
    A('s_lshl_b32 %s, %s, 7' % (sT3, sT3))
    A('s_add_u32 %s, %s, %d' % (sT3, sT3, WS_P))
    for q in range(4):
        A('v_and_b32 v10, %d, v4' % (1 << (2 * q)))
        A('v_cmp_ne_u32 vcc, 0, v10')
        A('v_add_u32 v%d, %d, v5' % (13 + q, 8192 * q))
        A('s_nop 0')
        A('v_cndmask_b32 v%d, v9, v%d, vcc' % (13 + q, 13 + q))
    A('v_lshlrev_b32 v7, 3, v0')
    A('v_cmp_gt_u32 vcc, 8, v0')
    A('v_lshlrev_b32 v17, 4, v0')
    A('v_min_u32 v7, 56, v7')
    A('v_cndmask_b32 v17, v9, v17, vcc')
    A('s_waitcnt lgkmcnt(0)')
    A('ds_read_b64 v[8:9], v7 offset:%d' % MLS)
    A('v_mov_b32 v10, %s' % v(vNon))
    A('v_mov_b32 v11, %s' % v(vNon))
    C('all eight owners on this XCD: the rows may stay in its L2; otherwise write them through')
    A('s_waitcnt vmcnt(0) lgkmcnt(0)')
    A('v_cmp_eq_u32 %s, %s, v136' % (MB, sTag))
    A('v_cmp_eq_u32 vcc, %s, v137' % sXc)
    A('v_mov_b32 v134, v8')
    A('v_mov_b32 v135, v9')
    A('s_and_b32 %s, s88, vcc_lo' % sT2)
    A('s_and_b32 %s, %s, 0xff' % (sT2, sT2))
    A('s_cmp_eq_u32 %s, 0xff' % sT2)
    if ts == 1:
        A('s_cselect_b32 s100, 1, 0')
        A('v_writelane_b32 %s, s100, 21' % v(vTS))
    A('s_cbranch_scc0 L_st1')
    for sc in ('', ' sc1'):
        if sc: lab('L_st1')
        for q in range(4):
            if 'norows' in dbg and q >= NR: continue
            A('buffer_store_dwordx4 %s, v%d, %s, %s offen%s' % (vr(hA + 4 * q, 4), 13 + q, srd(rWS), sT, sc))
        A('buffer_store_dwordx4 v[8:11], v17, %s, %s offen%s' % (srd(rWS), sT3, sc))
        if not sc: A('s_branch L_nopub')
    lab('L_nopub')
    stamp(4)
    C('gather addresses: group q, half hf -> producer 2 q + hf (rows of absent producers are pushed out of range)')
    A('s_lshr_b64 %s, %s, %s' % (MA, EX, sI))
    A('v_lshlrev_b32 v3, 4, v0')
    A('v_lshlrev_b32 v4, 3, v1')
    A('v_lshrrev_b32 v18, v4, s86')
    A('v_lshrrev_b32 v19, v4, s87')
    A('v_mov_b32 v20, 0x40000000')
    for q in range(4):
        A('v_and_b32 v21, 0x%x, %s' % (1 << (16 * (q & 1)), 'v18' if q < 2 else 'v19'))
        A('v_cmp_ne_u32 %s, 0, v21' % MJ[q])
        A('v_add_u32 v%d, %d, v3' % (24 + q, 1024 * q))
        A('s_nop 0')
        A('v_cndmask_b32 v%d, v20, v%d, %s' % (24 + q, 24 + q, MJ[q]))
    A('v_lshlrev_b32 v4, 3, v0')
    A('v_lshrrev_b64 v[18:19], v4, %s' % MA)
    A('v_and_b32 v4, 1, v18')
    A('v_cmp_gt_u32 %s, 8, v0' % MB)
    A('v_cmp_ne_u32 vcc, 0, v4')
    A('v_lshlrev_b32 v28, 7, v0')
    A('s_and_b64 %s, %s, vcc' % (MB, MB))
    A('v_cndmask_b32 v28, v20, v28, %s' % MB)
    A('s_lshl_b32 %s, %s, 3' % (sT, sH))
    A('s_add_u32 %s, %s, %s' % (sT2, sT, sI))
    A('s_lshl_b32 %s, %s, 12' % (sT2, sT2))
    A('s_lshl_b32 %s, %s, 7' % (sT, sT))
    A('s_lshl4_add_u32 %s, %s, %s' % (sT, sI, sT))
    A('s_add_u32 %s, %s, %d' % (sT, sT, WS_P))
    A('s_mov_b32 s86, 0'); A('s_mov_b32 s87, -1')
    A('s_mov_b32 s56, 0x0c0c0400'); A('s_mov_b32 s57, 0x04000c0c')
    C('LDS addresses of the own dumps: entry (w, par = half)')
    A('v_lshrrev_b32 v3, 3, v2')
    A('v_lshl_add_u32 v3, v1, 2, v3')
    A('v_mul_u32_u24 v3, 144, v3')
    A('v_and_b32 v4, 7, v2')
    A('v_lshl_add_u32 v3, v4, 4, v3')
    A('v_lshlrev_b32 v4, 3, v1')
    C('look at global memory only when the local stream is close to its end')
    A('v_mov_b32 v5, %d' % CNT)
    lab('L_spin3')
    A('ds_read_b32 v6, v5 offset:4')
    A('s_waitcnt lgkmcnt(0)')
    A('v_readfirstlane_b32 %s, v6' % sK)
    A('s_nop 1')
    A('s_cmp_ge_u32 %s, 1' % sK)
    A('s_cbranch_scc1 L_go')
    A('s_sleep %d' % (12 if 'ls' in dbg else 4))
    A('s_branch L_spin3')
    lab('L_go')
    stamp(10)
    C('fetch the tagged rows until every one of them carries the tag of this launch (bounded)')
    A('s_mov_b32 %s, 0' % sK)
    fO = 84
    lab('L_spin2')
    A('buffer_load_dwordx4 v[12:15], v28, %s, %s offen sc1' % (srd(rWS), sT))
    for q in range(4):
        A('buffer_load_dwordx4 %s, v%d, %s, %s offen sc1' % (vr(fO + 4 * q, 4), 24 + q, srd(rWS), sT2))
    A('s_add_u32 %s, %s, 1' % (sK, sK))
    A('s_waitcnt vmcnt(4)')
    A('v_cmp_ne_u32 vcc, %s, v14' % sTag)
    A('s_and_b64 s[58:59], vcc, %s' % MB)
    for q in range(4):
        A('s_waitcnt vmcnt(%d)' % (3 - q))
        A('v_perm_b32 v16, %s, %s, s56' % (v(fO + 4 * q + 1), v(fO + 4 * q)))
        A('v_perm_b32 v17, %s, %s, s57' % (v(fO + 4 * q + 3), v(fO + 4 * q + 2)))
        A('v_or_b32 v16, v16, v17')
        A('v_cmp_ne_u32 vcc, %s, v16' % sTag)
        A('s_and_b64 vcc, vcc, %s' % MJ[q])
        A('s_or_b64 s[58:59], s[58:59], vcc')
    A('s_cbranch_scc0 L_got')
    if 'norows' in dbg: A('s_branch L_got')
    A('s_cmp_ge_u32 %s, 0x4000' % sK)
    A('s_cbranch_scc1 L_got')
    A('s_sleep %d' % SLEEP)
    A('s_branch L_spin2')
    lab('L_got')
    stamp(5)
    if ts == 1: A('v_writelane_b32 %s, %s, 16' % (v(vTS), sK))
    A('v_mov_b32 v7, 0x%08x' % SENT_MC)
    A('v_cndmask_b32 v12, v7, v12, %s' % MB)
    C('the own column of the own foreign part never left the registers')
    A('s_cmp_eq_u32 %s, 0' % sF)
    A('s_cbranch_scc1 L_noown')
    A('v_cmp_eq_u32 vcc, %s, v0' % sI)
    A('v_subrev_u32 v8, v1, %s' % sI)
    A('s_nop 0')
    A('v_cndmask_b32 v12, v12, v134, vcc')
    A('v_cndmask_b32 v13, v13, v135, vcc')
    for q in range(4):
        A('v_cmp_eq_u32 vcc, %d, v8' % (2 * q))
        A('s_nop 1')
        for k in range(4):
            A('v_cndmask_b32 %s, %s, %s, vcc' % (v(fO + 4 * q + k), v(fO + 4 * q + k), v(hA + 4 * q + k)))
    lab('L_noown')
    A('v_mov_b32 v8, v12')
    red8('v_max_f32', 'v8')
    A('v_sub_f32 v12, v12, v8')
    A('v_exp_f32 v12, v12')
    A('v_readlane_b32 s52, v8, 0')
    A('v_mul_f32 v13, v12, v13')
    for p in range(8):
        A('v_readlane_b32 s%d, v12, %d' % (44 + p, p))
    red8('v_add_f32', 'v13')
    for q in range(4):
        A('v_mov_b32 v8, s%d' % (44 + 2 * q))
        A('v_mov_b32 v9, s%d' % (45 + 2 * q))
        A('v_cndmask_b32 %s, v8, v9, %s' % (v(hW + q), MA))
    A('v_readlane_b32 s53, v13, 0')
    for r in range(16):
        A('v_and_b32 %s, 0xffffff00, %s' % (v(fO + r), v(fO + r)))
    for k in range(4):
        A('v_mul_f32 %s, %s, %s' % (v(hA + k), v(hW), v(fO + k)))
    for q in range(1, 4):
        for k in range(4):
            A('v_fmac_f32 %s, %s, %s' % (v(hA + k), v(hW + q), v(fO + 4 * q + k)))
    A('v_mov_b32 v16, s53')
    A('v_cndmask_b32 v18, v16, 0, %s' % MA)
    A('s_lshl_b32 %s, %s, 5' % (sT, sI))
    A('s_add_u32 %s, %s, %s' % (sT, sT, sH))
    A('s_lshl_b32 %s, %s, 8' % (sT, sT))
    A('v_lshlrev_b32 v7, 3, v2')
    A('v_lshl_add_u32 v7, v1, 2, v7')
    if 'wbl2' in dbg:
        A('s_and_b32 %s, s2, 0xf8' % sT2)
        A('s_cmp_lg_u32 %s, 24' % sT2)
        A('s_cbranch_scc1 L_nowb')
        A('buffer_wbl2 sc1')
        lab('L_nowb')
    stamp(6)
    A('s_barrier')
    stamp(7)
    oM = 8; oX = 84
    for w in range(NS):
        A('ds_read_b64 %s, v4 offset:%d' % (vr(oM + 2 * w, 2), OWNML + 16 * w))
    for w in range(NS):
        A('ds_read_b128 %s, v3 offset:%d' % (vr(oX + 4 * w, 4), OWN + 1152 * w))
    A('s_waitcnt lgkmcnt(4)')
    A('v_max3_f32 v20, %s, %s, s52' % (v(oM), v(oM + 2)))
    A('v_max3_f32 v20, v20, %s, %s' % (v(oM + 4), v(oM + 6)))
    A('v_mov_b32 v21, v20')
    A('s_nop 1')
    A('v_permlane32_swap_b32 v21, v20')
    A('v_max_f32 v20, v21, v20')
    A('v_sub_f32 v16, s52, v20')
    for w in range(NS):
        A('v_sub_f32 %s, %s, v20' % (v(oM + 2 * w), v(oM + 2 * w)))
    A('v_exp_f32 v16, v16')
    for w in range(NS):
        A('v_exp_f32 %s, %s' % (v(oM + 2 * w), v(oM + 2 * w)))
    A('v_mul_f32 v18, v18, v16')
    A('v_pk_mul_f32 %s, %s, v[16:17] op_sel_hi:[1,0]' % (vr(hA, 2), vr(hA, 2)))
    A('v_pk_mul_f32 %s, %s, v[16:17] op_sel_hi:[1,0]' % (vr(hA + 2, 2), vr(hA + 2, 2)))
    for w in range(NS):
        A('v_fmac_f32 v18, %s, %s' % (v(oM + 2 * w), v(oM + 2 * w + 1)))
    A('s_waitcnt lgkmcnt(0)')
    A('v_mov_b32 v19, v18')
    for w in range(NS):
        for k in (0, 2):
            A('v_pk_fma_f32 %s, %s, %s, %s op_sel_hi:[1,0,1]' % (vr(hA + k, 2), vr(oX + 4 * w + k, 2), vr(oM + 2 * w, 2), vr(hA + k, 2)))
        if w == 0:
            A('v_permlane32_swap_b32 v19, v18')
            A('v_add_f32 v18, v18, v19')
            A('v_rcp_f32 v18, v18')
    A('s_nop 1')
    C('lower half keeps d = 4 c, 4 c + 1 ; upper half 4 c + 2, 4 c + 3')
    A('v_permlane32_swap_b32 %s, %s' % (v(hA), v(hA + 2)))
    A('v_permlane32_swap_b32 %s, %s' % (v(hA + 1), v(hA + 3)))
    A('v_pk_add_f32 %s, %s, %s' % (vr(hA, 2), vr(hA, 2), vr(hA + 2, 2)))
    A('v_pk_mul_f32 %s, %s, v[18:19] op_sel_hi:[1,0]' % (vr(hA, 2), vr(hA, 2)))
    A('v_cvt_pk_bf16_f32 v10, %s, %s' % (v(hA), v(hA + 1)))
    A('buffer_store_dword v10, v7, %s, %s offen%s' % (srd(rX), sT, ' sc0 sc1 nt' if 'oall' in dbg else ' sc1' if 'osc1' in dbg else ' nt' if 'ont' in dbg else ''))
    if ts:
        stamp(8)
        lab('L_tsout')
        A('s_waitcnt vmcnt(0)')
        stamp(9)
        mk_srd(rWS, pws, 0x2000000)
        A('s_lshl_b32 %s, s2, 3' % sT)
        A('s_add_u32 %s, %s, %s' % (sT, sT, sW))
        A('s_lshl_b32 %s, %s, 8' % (sT, sT))
        A('s_add_u32 %s, %s, 0x1000000' % (sT, sT))
        A('v_lshlrev_b32 v1, 2, v0')
        A('buffer_store_dword %s, v1, %s, %s offen' % (v(vTS), srd(rWS), sT))
        if 'dd' in dbg:
            mk_srd(rY, pdbg, 64)
            A('v_readlane_b32 s44, %s, 0' % v(vTS))
            for k, (a_, b_) in enumerate(((3, 17), (1, 20), (17, 6), (9, 9))):
                A('v_readlane_b32 s45, %s, %d' % (v(vTS), a_))
                A('v_readlane_b32 s46, %s, %d' % (v(vTS), b_))
                A('s_cmp_eq_u32 %s, 7' % sW)
                A('s_cselect_b32 s45, s46, s45')
                A('s_sub_u32 s45, s45, s44')
                A('v_mov_b32 v%d, s45' % (4 + k))
            A('s_cmp_eq_u32 %s, 7' % sW)
            A('s_cselect_b32 s47, 16, 0')
            A('s_cmp_eq_u32 %s, 0' % sW)
            A('s_cselect_b32 s46, 1, 0')
            A('s_cmp_eq_u32 %s, 7' % sW)
            A('s_cselect_b32 s46, 1, s46')
            A('s_cmp_eq_u32 s2, 28')
            A('s_cselect_b32 s45, 32, 1024')
            A('s_cmp_eq_u32 s2, 1')
            A('s_cselect_b32 s45, 0, s45')
            A('s_cmp_eq_u32 s46, 0')
            A('s_cselect_b32 s45, 1024, s45')
            A('s_add_u32 s47, s47, s45')
            A('s_mov_b64 exec, 1')
            A('buffer_store_dwordx4 v[4:7], off, %s, s47' % srd(rY))
    lab('L_end')
    A('s_endpgm')
    L.append('.p2align 7')
    L.append('.type L_guess,@object')
    lab('L_guess')
    t = usual_table()
    for x in t: L.append('    .long 0x%08x' % x)
    L.append('.size L_guess, %d' % (4 * len(t)))
    nv = vTS + 1 if ts else NV
    out = header + '; @launch grid=(256,1,1) block=(%d,1,1) lds=%d\n' % ((NS + 1) * 64, LDS)
    out += DOC
    out += '.amdgcn_target "amdgcn-amd-amdhsa--gfx950"\n.text\n.globl %s_kernel\n.p2align 8\n.type %s_kernel,@function\n' % (NAME, NAME)
    out += '\n'.join(L) + '\n'
    out += '''.section .rodata,"a"
.p2align 6
.amdhsa_kernel %s_kernel
  .amdhsa_next_free_vgpr %d
  .amdhsa_next_free_sgpr 102
  .amdhsa_accum_offset %d
  .amdhsa_group_segment_fixed_size 0
  .amdhsa_kernarg_size 64
  .amdhsa_user_sgpr_count 2
  .amdhsa_user_sgpr_kernarg_segment_ptr 1
  .amdhsa_system_sgpr_workgroup_id_x 1
.end_amdhsa_kernel
''' % (NAME, nv, (nv + 3) // 4 * 4)
    return out

def header():
    ref = open('cdna_kernels/%s.s.ref' % NAME).read().splitlines()
    h = []
    for l in ref:
        if l.startswith('; @launch'): break
        h.append(l)
    return '\n'.join(h) + '\n'

if __name__ == '__main__':
    import argparse
    ap = argparse.ArgumentParser()
    ap.add_argument('-o', default='cdna_kernels/%s.s' % NAME)
    ap.add_argument('--pol', default='nt')
    ap.add_argument('--ts', type=int, default=0)
    ap.add_argument('--trig', type=int, default=2)
    ap.add_argument('--dbg', default='')
    ap.add_argument('--tpos', type=int, default=0)
    ap.add_argument('--dfirst', action='store_true')
    ap.add_argument('--sleep', type=int, default=16)
    ap.add_argument('--w2', type=int, default=0)
    ap.add_argument('--wm', type=lambda x: int(x, 16), default=0xff)
    ap.add_argument('--xm', type=lambda x: int(x, 16), default=0xf0)
    ap.add_argument('--win', type=int, default=6)
    ap.add_argument('--head', type=int, default=6)
    ap.add_argument('--perm', type=lambda x: int(x, 16), default=0x76245103)
    a = ap.parse_args()
    pol = '' if a.pol == 'def' else a.pol.replace('_', ' ')
    open(a.o, 'w').write(gen(pol, a.ts, header(), a.trig, a.dbg, a.win, a.head, a.perm, a.sleep, a.tpos, a.dfirst, a.w2, a.wm, a.xm))
```

```python
import sys, struct
import numpy as np

NAME = 'standalone__paged_block_table_kv_radixattention__sampling'
KV_BYTES = 75497472
NS = 4
ESTR = 276 * 4
DUMP = 8 * ESTR + 512
ITEMS = 0
OWNML = 2048
CNT = OWNML + 64
MLS = CNT + 32
OWN = 2560
FD = OWN + 8 * 576
EXC = FD + 4096
LDS = FD + NS * DUMP
WS_P = 32 * 8 * 8 * 512
WS_C = WS_P + 32 * 8 * 128
WS_USED = WS_C + 32 * 128
F_DUMP, F_LAST, F_TRIG = 16, 17, 18

DOC = '''; ---------------------------------------------------------------------------------------------------
; ---------------------------------------------------------------------------------------------------
'''

def f32bits(x):
    return struct.unpack('<I', struct.pack('<f', x))[0]
C_SCALE = f32bits(128 ** -0.5 * 1.4426950408889634)
SENT_RAW = f32bits(-1e30)
SENT_MC = f32bits(float(np.float32(-1e30) * np.float32(128 ** -0.5 * 1.4426950408889634)))

def plan(bt, ctx):
    nb = [(min(c, 2048) + 15) // 16 if c > 0 else 128 for c in ctx]
    S = 0
    while S < max(nb) and all(bt[b][S] == bt[0][S] for b in range(8)): S += 1
    n = [max(x - S, 0) for x in nb]
    Q = (S + sum(n) + 7) >> 3
    own = [min(x, Q) for x in n]
    take = [Q - x for x in own]
    pool = [bt[0][j] for j in range(S)]
    for b in range(8): pool += [bt[b][S + y] for y in range(own[b], n[b])]
    key = [take[b] * 8 - b for b in range(8)]
    out = []
    for i in range(8):
        off = sum(take[b] for b in range(8) if key[b] > key[i])
        out.append((pool[off:off + take[i]], [bt[i][S + y] for y in range(own[i])]))
    return out

def usual_table():
    bt = [list(range(64)) + [64 + 64 * b + j for j in range(64)] for b in range(8)]
    ctx = [2048 - ((b + 1) * 2654435761) % 512 for b in range(8)]
    p = [f + o + [576] * 8 for f, o in plan(bt, ctx)]
    return [p[i][x] << 17 for i in range(8) for x in range(2 * NS)]

def gen(pol='nt', ts=0, header='', TRIGREM=2, dbg='', W=6, H=6, PERM=0x73406152, SLEEP=16, TPOS=0, DFIRST=False, W2=0, WM=0xff, XM=0xf0):
    L = []
    def A(s): L.append('    ' + s)
    def lab(s): L.append(s + ':')
    def C(s): L.append('    ; ' + s)
    def v(i): return 'v%d' % i
    def vr(i, n): return 'v[%d:%d]' % (i, i + n - 1)
    def srd(r): return 's[%d:%d]' % (r, r + 3)
    def srd_tail(r, nbytes):
        A('s_mov_b32 s%d, %d' % (r + 2, nbytes)); A('s_mov_b32 s%d, 0x20000' % (r + 3))
    def srd_base(r, p):
        A('s_mov_b32 s%d, s%d' % (r, p)); A('s_and_b32 s%d, s%d, 0xffff' % (r + 1, p + 1))
    def mk_srd(r, p, nbytes):
        srd_base(r, p); srd_tail(r, nbytes)
    LD = 'cas' not in dbg.split(',')
    CPF = 8 if 'cpf8' in dbg else 256 if 'cpfa' in dbg else 16
    Q3N = 3 if 'q33' in dbg else 6
    NR = 2 if 'half' in dbg else 0
    V0N = 1 if 'v01' in dbg else 2
    DPP = 'row_mask:0xf bank_mask:0xf'
    sW = 's3'
    pq, pk, pv, pbt, pctx, pout, pdbg, pws = 4, 6, 8, 10, 12, 14, 16, 18
    rK, rV, rBT, rX, rWS, rY = 20, 24, 28, 32, 36, 40
    sN, sCum = 44, 52
    sFl, sCA, sCB = 's44', 's45', 's48'
    OWNX = 's[50:51]'
    sH, sI, sH256, sS, sQ, sOff, sF, sK, sOwn, sU, sUf, sPn = ['s%d' % i for i in range(60, 72)]
    EX = 's[72:73]'; ODD = 's[74:75]'; BASE = 's[76:77]'
    selLo, selHi, sC = 's78', 's79', 's80'
    sXc, sCen = 's78', 's79'
    sOA, sOB, sDA, sDB, sT = 's81', 's82', 's83', 's84', 's85'
    sTag = sDB
    MA, MB = 's[86:87]', 's[88:89]'
    MJ = ['s[90:91]', 's[92:93]', 's[94:95]', 's[96:97]']
    sT2, sT3 = 's98', 's99'
    vKo = [8, 9]; vVo = [10, 11, 12, 13]
    vCtx, vNinf, vPm, vMr, vMc, vA1, vSo, vD, vLA, vLB = range(14, 24)
    vP, vQ, vS, vO, vK, vV, vL, vOne, vA2 = 24, 28, 36, 52, 84, 116, 148, 152, 156
    NV = 157
    vTS = 158
    def stamp(idx):
        if ts == 1 or (ts and idx == 9):
            A('s_memrealtime s[100:101]')
            A('s_waitcnt lgkmcnt(0)')
            A('v_writelane_b32 %s, s100, %d' % (v(vTS), idx))
    def stampk(off):
        if ts == 1:
            A('s_memrealtime s[100:101]')
            A('s_lshl_b32 m0, %s, 1' % sK)
            A('s_add_u32 m0, m0, %d' % (16 - 4 + off))
            A('s_waitcnt lgkmcnt(0)')
            A('v_writelane_b32 %s, s100, m0' % v(vTS))
    nw = [0]
    inloop = [False]
    VW = 8 if 'vw8' in dbg else 7 if 'vw7' in dbg else 14 if 'vwf' in dbg else 0
    def window(k):
        if W2 and (WM >> k) & 1:
            nw[0] += 1
            A('s_cbranch_vccnz L_win%d' % nw[0])
            A('s_waitcnt vmcnt(%d)' % (W2 - 1))
            lab('L_win%d' % nw[0])
        A('s_waitcnt vmcnt(%d)' % (W - 1))
    def loadK(lo=0, hi=8, win=True):
        for n in range(lo, hi):
            j, hf = n >> 1, n & 1
            if win: window(n)
            A('buffer_load_dwordx4 %s, %s, %s, %s offen offset:%d %s' % (vr(vK + n * 4, 4), v(vKo[j & 1]), srd(rK), sOA if j < 2 else sOB, 128 * hf, pol))
    def loadV(lo=0, hi=8, cur=False):
        for i in range(lo, hi):
            so = (sCA if cur else sOA) if i < 4 else (sCB if cur else sOB)
            if VW and inloop[0]:
                nw[0] += 1
                A('s_cbranch_vccnz L_win%d' % nw[0])
                window(i)
                lab('L_win%d' % nw[0])
                if VW < 14: A('s_waitcnt vmcnt(%d)' % (VW - 1))
            else:
                window(i)
            A('buffer_load_dwordx4 %s, %s, %s, %s offen %s' % (vr(vV + i * 4, 4), v(vVo[i & 3]), srd(rV), so, pol))
    def reset_acc():
        for r in range(32):
            A('v_mov_b32 %s, 0' % v(vO + r))
        for r in range(4):
            A('v_mov_b32 %s, 0' % v(vL + r))
        A('v_mov_b32 %s, 0x%08x' % (v(vMr), SENT_RAW))
        A('v_mov_b32 %s, 0x%08x' % (v(vMc), SENT_MC))

    lab(NAME + '_kernel')
    A('s_cmp_ge_u32 s2, 256')
    A('s_cbranch_scc1 L_end')
    A('s_load_dwordx16 s[4:19], s[0:1], 0')
    C('first round guessed from the usual table layout; checked against the real list below')
    A('s_getpc_b64 s[46:47]')
    lab('L_pc')
    A('s_and_b32 %s, s2, 56' % sT)
    A('s_lshl2_add_u32 %s, %s, L_guess-L_pc' % (sT, sT))
    A('s_load_dwordx8 s[52:59], s[46:47], %s' % sT)
    if ts:
        A('v_mov_b32 %s, 0' % v(vTS))
        A('s_memrealtime s[100:101]')
    if 'cpf' in dbg:
        C('pull the code of this kernel into L2 before the streams fill the memory queues')
        A('s_cmp_ge_u32 s2, %d' % CPF)
        A('s_cbranch_scc1 L_nocpf')
        A('v_lshlrev_b32 v2, 7, v0')
        A('v_cmp_gt_u32 vcc, L_guess-L_pc, v2')
        A('s_and_saveexec_b64 s[44:45], vcc')
        A('s_cbranch_execz L_cpf2')
        A('global_load_dword v3, v2, s[46:47]')
        lab('L_cpf2')
        A('s_mov_b64 exec, s[44:45]')
        lab('L_nocpf')
    A('v_lshrrev_b32 v1, 6, v0')
    A('v_and_b32 v0, 63, v0')
    A('v_readfirstlane_b32 %s, v1' % sW)
    C('owner i = (wg >> 3) & 7 of head h = perm(wg & 7) + 8 (wg >> 6): the eight owners of a head are neighbours')
    A('s_and_b32 %s, s2, 7' % sH)
    A('s_lshl_b32 %s, %s, 2' % (sH, sH))
    A('s_lshr_b32 %s, 0x%08x, %s' % (sH, PERM, sH))
    A('s_and_b32 %s, %s, 7' % (sH, sH))
    A('s_lshr_b32 %s, s2, 6' % sT)
    if 'crev' in dbg: A('s_xor_b32 %s, %s, 3' % (sT, sT))
    A('s_lshl3_add_u32 %s, %s, %s' % (sH, sT, sH))
    MAPS = {'m1': [3, 0, 1, 2, 4], 'm2': [0, 3, 1, 2, 4], 'm3': [0, 1, 3, 2, 4], 'm4': [0, 1, 3, 4, 2], 'm5': [3, 0, 1, 4, 2], 'm6': [0, 3, 4, 1, 2]}
    for k_, bits in MAPS.items():
        if k_ in dbg.split(','):
            A('s_mov_b32 %s, 0' % sT2)
            for o, src in enumerate(bits):
                A('s_bfe_u32 %s, %s, 0x%x' % (sT, sH, 0x10000 | src))
                A('s_lshl_b32 %s, %s, %d' % (sT, sT, o))
                A('s_or_b32 %s, %s, %s' % (sT2, sT2, sT))
            A('s_mov_b32 %s, %s' % (sH, sT2))
    A('s_bfe_u32 %s, s2, 0x30003' % sI)
    A('s_lshl_b32 %s, %s, 8' % (sH256, sH))
    A('s_cmp_eq_u32 %s, 0' % sW)
    A('s_cbranch_scc1 L_helper')
    A('s_sub_u32 %s, %s, 1' % (sW, sW))
    A('s_mov_b32 m0, %s' % sW)
    C('lane = 16 G + 2 t + par.  K / Q: row t, bytes (2 G + par) 16 ; V: row 2 G, bytes (lane & 15) 16')
    A('v_lshrrev_b32 v2, 4, v0')
    A('v_bfe_u32 v4, v0, 1, 3')
    A('v_and_b32 v5, 1, v0')
    A('v_lshl_add_u32 %s, v4, 13, %s' % (v(vKo[0]), sH256))
    A('v_lshl_add_u32 %s, v2, 5, %s' % (v(vKo[0]), v(vKo[0])))
    A('v_lshl_add_u32 %s, v5, 4, %s' % (v(vKo[0]), v(vKo[0])))
    A('v_add_u32 %s, 0x10000, %s' % (v(vKo[1]), v(vKo[0])))
    srd_tail(rK, KV_BYTES)
    if 'qf' in dbg: srd_tail(rX, 65536)
    A('s_waitcnt lgkmcnt(0)')
    if ts: A('v_writelane_b32 %s, s100, 0' % v(vTS))
    A('s_movrels_b32 %s, s52' % sOA)
    A('s_movrels_b32 %s, s56' % sOB)
    srd_base(rK, pk)
    if 'qf' in dbg:
        srd_base(rX, pq)
        A('buffer_load_dwordx4 %s, %s, %s, 0 offen' % (vr(vQ, 4), v(vKo[0]), srd(rX)))
        A('buffer_load_dwordx4 %s, %s, %s, 0 offen offset:128' % (vr(vQ + 4, 4), v(vKo[0]), srd(rX)))
    stamp(3)
    if 'probeK' in dbg:
        A('buffer_load_dword v36, off, %s, %s nt' % (srd(rK), sOA))
        A('s_waitcnt vmcnt(0)'); stamp(6)
        mk_srd(rV, pv, KV_BYTES)
        A('buffer_load_dword v36, off, %s, %s nt' % (srd(rV), sOA))
        A('s_waitcnt vmcnt(0)'); stamp(7)
        loadK(win=False)
        A('s_waitcnt vmcnt(7)'); stamp(8)
        A('s_waitcnt vmcnt(4)'); stamp(10)
        A('s_waitcnt vmcnt(0)'); stamp(11)
    if 'probe1' in dbg:
        loadK(0, 1, win=False)
        A('s_waitcnt vmcnt(0)'); stamp(6)
        loadK(1, 2, win=False)
        A('s_waitcnt vmcnt(0)'); stamp(7)
        loadK(2, 8, win=False)
        A('s_waitcnt vmcnt(5)'); stamp(8)
        A('s_waitcnt vmcnt(3)'); stamp(10)
        A('s_waitcnt vmcnt(0)'); stamp(11)
    if 'vt1' in dbg:
        srd_base(rV, pv)
        loadK(0, 1, win=False)
        A('buffer_load_dword v36, off, %s, %s' % (srd(rV), sOA))
        loadK(1, 8, win=False)
    else:
        loadK(win=False)
    mk_srd(rX, pq, 65536); mk_srd(rY, pctx, 32); mk_srd(rV, pv, KV_BYTES)
    A('v_and_b32 v3, 15, v0')
    A('v_lshl_add_u32 %s, v2, 14, %s' % (v(vVo[0]), sH256))
    A('v_lshl_add_u32 %s, v3, 4, %s' % (v(vVo[0]), v(vVo[0])))
    A('v_add_u32 %s, 0x2000, %s' % (v(vVo[1]), v(vVo[0])))
    A('v_add_u32 %s, 0x10000, %s' % (v(vVo[2]), v(vVo[0])))
    A('v_add_u32 %s, 0x12000, %s' % (v(vVo[3]), v(vVo[0])))
    A('v_lshlrev_b32 v6, 2, v4')
    if 'vt2' in dbg:
        A('buffer_load_dword v36, off, %s, %s' % (srd(rV), sOA))
    if 'qf' not in dbg:
        A('buffer_load_dwordx4 %s, %s, %s, 0 offen' % (vr(vQ, 4), v(vKo[0]), srd(rX)))
        A('buffer_load_dwordx4 %s, %s, %s, 0 offen offset:128' % (vr(vQ + 4, 4), v(vKo[0]), srd(rX)))
    A('buffer_load_dword %s, v6, %s, 0 offen' % (v(vCtx), srd(rY)))
    A('s_mov_b32 s74, 0xaaaaaaaa'); A('s_mov_b32 s75, 0xaaaaaaaa')
    A('s_mov_b32 s76, 0x00030003'); A('s_mov_b32 s77, 0x00030003')
    A('s_mov_b32 %s, 0x05040100' % selLo); A('s_mov_b32 %s, 0x07060302' % selHi)
    A('s_mov_b32 %s, 0x%08x' % (sC, C_SCALE))
    A('v_mov_b32 %s, 0xff800000' % v(vNinf))
    A('v_mov_b32 v7, 0xffff0000')
    A('v_mov_b32 %s, 0xffff' % v(vPm))
    A('v_cndmask_b32 %s, %s, v7, %s' % (v(vPm), v(vPm), ODD))
    A('v_lshl_add_u32 v7, v2, 1, v5')
    for r in range(4):
        A('v_mov_b32 %s, 0x3f803f80' % v(vOne + r))
    C('addresses of the own dump: entry 2 w + par')
    A('s_lshl_b32 %s, %s, 1' % (sT, sW))
    A('v_add_u32 v3, %s, v5' % sT)
    A('v_lshlrev_b32 %s, 3, v3' % v(vA2))
    A('v_add_u32 %s, %d, %s' % (v(vA2), OWNML, v(vA2)))
    A('v_lshl_add_u32 v3, v3, 2, v2')
    A('v_mul_u32_u24 %s, 144, v3' % v(vA1))
    A('v_add_u32 %s, %d, %s' % (v(vA1), OWN, v(vA1)))
    A('s_lshl_b32 %s, %s, 1' % (sT2, sI))
    A('s_lshl_b64 %s, %s, %s' % (OWNX, BASE, sT2))
    C('item table address of lane k: slot 2 w + 8 (k >> 1) + (k & 1)')
    A('v_lshrrev_b32 v1, 1, v0')
    A('v_mad_u32_u24 v1, v1, %d, %s' % (2 * NS, sT))
    A('v_add_lshl_u32 v1, v1, v5, 3')
    reset_acc()
    def setv():
        if W2:
            A('s_and_b32 %s, s2, 7' % sT3)
            A('s_bitcmp1_b32 0x%x, %s' % (XM, sT3))
            A('s_cselect_b64 vcc, -1, 0')
    setv()
    A('s_mov_b32 %s, 0' % sK)
    if 'v0' in dbg:
        for i in range(V0N):
            A('buffer_load_dwordx4 %s, %s, %s, %s offen %s' % (vr(vV + i * 4, 4), v(vVo[i & 3]), srd(rV), sOA if i < 4 else sOB, pol))
        loadV(V0N, H)
    elif 'noq3' not in dbg:
        for i in range(H):
            A('s_waitcnt vmcnt(%d)' % (W - 1 + (3 if i < Q3N else 0)))
            A('buffer_load_dwordx4 %s, %s, %s, %s offen %s' % (vr(vV + i * 4, 4), v(vVo[i & 3]), srd(rV), sOA if i < 4 else sOB, pol))
    else:
        loadV(0, H)
    stamp(2)
    A('s_barrier')
    stamp(1)
    A('ds_read_b64 %s, v1 offset:%d' % (vr(vSo, 2), ITEMS))
    A('s_waitcnt vmcnt(%d)' % H)
    C('ctx fix-up per lane; ctx <= 0 masks every key in the reference, i.e. uniform weights: q = 0, ctx = 2048')
    A('v_cmp_lt_i32 vcc, 0, %s' % v(vCtx))
    A('v_mov_b32 v2, 0x800')
    A('v_min_i32 %s, %s, v2' % (v(vCtx), v(vCtx)))
    A('v_cndmask_b32 %s, v2, %s, vcc' % (v(vCtx), v(vCtx)))
    for r in range(8):
        A('v_cndmask_b32 %s, 0, %s, vcc' % (v(vQ + r), v(vQ + r)))
    A('v_sub_u32 %s, %s, v7' % (v(vCtx), v(vCtx)))
    setv()
    A('s_waitcnt lgkmcnt(0)')
    A('v_readlane_b32 %s, %s, 0' % (sT, v(vSo)))
    A('v_readlane_b32 %s, %s, 1' % (sT2, v(vSo)))
    A('s_nop 1')
    A('s_xor_b32 s46, %s, %s' % (sT, sOA))
    A('s_xor_b32 s47, %s, %s' % (sT2, sOB))
    A('s_or_b32 s46, s46, s47')
    A('s_cbranch_scc1 L_redo')
    lab('L_loop')
    A('s_add_u32 %s, %s, 1' % (sT, sK))
    A('s_add_u32 %s, %s, 2' % (sT2, sK))
    A('s_add_u32 %s, %s, 3' % (sT3, sK))
    A('s_mov_b32 %s, %s' % (sCA, sOA))
    A('s_mov_b32 %s, %s' % (sCB, sOB))
    A('v_readlane_b32 %s, %s, %s' % (sDA, v(vD), sK))
    A('v_readlane_b32 %s, %s, %s' % (sDB, v(vD), sT))
    A('v_readlane_b32 %s, %s, %s' % (sOA, v(vSo), sT2))
    A('v_readlane_b32 %s, %s, %s' % (sOB, v(vSo), sT3))
    A('s_mov_b32 %s, %s' % (sK, sT2))
    A('s_mov_b32 %s, %s' % (sFl, sDA))
    def trigger():
        C('tell the helper that the local stream is close to its end')
        A('s_bitcmp0_b32 %s, %d' % (sFl, F_TRIG))
        A('s_cbranch_scc1 L_nt')
        A('v_mov_b32 v1, %d' % CNT)
        A('v_mov_b32 v4, 1')
        A('ds_write_b32 v1, v4 offset:4')
        lab('L_nt')
    if TPOS == 0: trigger()
    inloop[0] = True
    if VW:
        A('s_bitcmp1_b32 %s, %d' % (sFl, F_LAST if 'vl' in dbg else F_TRIG))
        A('s_cselect_b64 vcc, -1, 0')
    C('validity of the 4 x 8 keys per column: member of the block and position < ctx')
    for (d, m, lim) in ((sDA, MA, vLA), (sDB, MB, vLB)):
        A('s_and_b32 %s, %s, 7' % (sT, d))
        A('s_lshl_b32 %s, %s, 1' % (sT, sT))
        A('s_lshl_b64 %s, %s, %s' % (m, BASE, sT))
        A('s_bitcmp1_b32 %s, 3' % d)
        A('s_cselect_b64 %s, -1, %s' % (m, m))
        A('s_and_b32 %s, %s, 0x400007f0' % (d, d))
        A('v_subrev_u32 %s, %s, %s' % (v(lim), d, v(vCtx)))
        A('v_cndmask_b32 %s, -1, %s, %s' % (v(lim), v(lim), m))
    A('v_cmp_lt_i32 %s, 0, %s' % (MJ[0], v(vLA)))
    A('v_cmp_lt_i32 %s, 8, %s' % (MJ[1], v(vLA)))
    A('v_cmp_lt_i32 %s, 0, %s' % (MJ[2], v(vLB)))
    A('v_cmp_lt_i32 %s, 8, %s' % (MJ[3], v(vLB)))
    stampk(0)
    A('s_waitcnt vmcnt(%d)' % H)
    stampk(1)
    for hf in range(2):
        for j in range(4):
            d = vr(vS + 4 * j, 4)
            A('v_mfma_f32_16x16x32_bf16 %s, %s, %s, %s' % (d, vr(vK + (j * 2 + hf) * 4, 4), vr(vQ + 4 * hf, 4), '0' if hf == 0 else d))
    tail = list(range(H, 8))
    def vtail(last=False):
        if tail:
            i = tail.pop(0); loadV(i, i + 1, cur=True)
        while last and tail:
            i = tail.pop(0); loadV(i, i + 1, cur=True)
    vtail()
    A('s_nop 4')
    D = lambda j, r: v(vS + 4 * j + r)
    qp = 'quad_perm:[1,0,3,2] ' + DPP
    C('rows and columns both carry the chunk parity: add the two diagonal halves; even lane key 2 G, odd lane key 2 G + 1')
    for j in range(4):
        A('v_add_f32_dpp %s, %s, %s %s' % (D(j, 0), D(j, 1), D(j, 0), qp))
        A('v_add_f32_dpp %s, %s, %s %s' % (D(j, 3), D(j, 2), D(j, 3), qp))
    for j in range(4):
        A('v_cndmask_b32 %s, %s, %s, %s' % (D(j, 0), D(j, 0), D(j, 3), ODD))
    for j in range(4):
        A('v_cndmask_b32 %s, %s, %s, %s' % (D(j, 0), v(vNinf), D(j, 0), MJ[j]))
    C('running maximum of the column (over the four lane groups)')
    A('v_max3_f32 v1, %s, %s, %s' % (D(0, 0), D(1, 0), D(2, 0)))
    A('v_max3_f32 v1, v1, %s, %s' % (D(3, 0), v(vMr)))
    A('v_mov_b32 v2, v1')
    A('s_nop 1')
    A('v_permlane16_swap_b32 v2, v1')
    A('v_max_f32 v1, v2, v1')
    A('v_mov_b32 v2, v1')
    A('s_nop 1')
    A('v_permlane32_swap_b32 v2, v1')
    A('v_max_f32 %s, v2, v1' % v(vMr))
    vtail()
    A('v_mul_f32 v1, %s, %s' % (sC, v(vMr)))
    A('v_sub_f32 v2, %s, v1' % v(vMc))
    A('v_mov_b32 %s, v1' % v(vMc))
    A('v_exp_f32 v2, v2')
    for j in range(4):
        A('v_fma_f32 %s, %s, %s, -v1' % (D(j, 1), D(j, 0), sC))
    for j in range(4):
        A('v_exp_f32 %s, %s' % (D(j, 1), D(j, 1)))
    for r in range(0, 8, 2):
        A('v_pk_mul_f32 %s, %s, v[2:3] op_sel_hi:[1,0]' % (vr(vO + r, 2), vr(vO + r, 2)))
    for j in range(4):
        A('v_cvt_pk_bf16_f32 %s, %s, %s' % (v(vP + j), D(j, 1), D(j, 1)))
    A('v_mul_f32 %s, %s, v2' % (v(vL), v(vL)))
    for j in range(4):
        A('v_and_b32 %s, %s, %s' % (v(vP + j), v(vPm), v(vP + j)))
    vtail()
    for r in range(8, 32, 2):
        A('v_pk_mul_f32 %s, %s, v[2:3] op_sel_hi:[1,0]' % (vr(vO + r, 2), vr(vO + r, 2)))
    C('denominator: all-ones rows times P')
    A('v_mfma_f32_16x16x32_bf16 %s, %s, %s, %s' % (vr(vL, 4), vr(vOne, 4), vr(vP, 4), vr(vL, 4)))
    vtail(True)
    if TPOS == 1: trigger()
    stampk(2)
    A('s_bitcmp0_b32 %s, %d' % (sFl, F_LAST))
    A('s_cbranch_scc0 L_k1')
    loadK(0, H)
    A('s_waitcnt vmcnt(%d)' % H)
    A('s_branch L_k2')
    lab('L_k1')
    A('s_waitcnt vmcnt(0)')
    lab('L_k2')
    if TPOS == 2: trigger()
    stampk(3)
    if ts == 1 or TPOS == 2: A('s_bitcmp0_b32 %s, %d' % (sFl, F_LAST))
    def perms(e):
        tb = vS + 4 * (e % 3)
        w = e >> 1
        for u in range(4):
            A('v_perm_b32 %s, %s, %s, %s' % (v(tb + u), v(vV + (2 * u + 1) * 4 + w), v(vV + (2 * u) * 4 + w), selHi if e & 1 else selLo))
    def pv_(e):
        tb = vS + 4 * (e % 3)
        A('v_mfma_f32_16x16x32_bf16 %s, %s, %s, %s' % (vr(vO + 4 * e, 4), vr(tb, 4), vr(vP, 4), vr(vO + 4 * e, 4)))
    ktail = list(range(H, 8))
    def kt():
        if ktail:
            n = ktail.pop(0)
            A('s_cbranch_scc0 L_kt%d' % n)
            loadK(n, n + 1)
            lab('L_kt%d' % n)
    C('V^T fragments by an in-lane 8 x 8 transpose; O^T tile e holds d = 32 G + 8 r + e')
    perms(0)
    for e in range(1, 8):
        perms(e)
        pv_(e - 1)
        if e in (1, 4): kt()
    A('s_nop 1')
    pv_(7)
    def next_loads():
        A('s_cbranch_scc0 L_v2')
        if ktail: loadK(ktail[0], 8)
        loadV(0, H)
        lab('L_v2')
    if not DFIRST: next_loads()
    A('s_bitcmp1_b32 %s, %d' % (sFl, F_DUMP))
    A('s_cbranch_scc1 L_dump')
    lab('L_nodump')
    if DFIRST:
        A('s_bitcmp0_b32 %s, %d' % (sFl, F_LAST))
        next_loads()
    A('s_bitcmp0_b32 %s, %d' % (sFl, F_LAST))
    A('s_cbranch_scc1 L_loop')
    inloop[0] = False
    stamp(5)
    C('own dump (lanes of column i), in d order')
    A('s_mov_b64 exec, %s' % OWNX)
    A('ds_write2_b32 %s, %s, %s offset0:0 offset1:1' % (v(vA2), v(vMc), v(vL)))
    for e in range(0, 8, 2):
        for r in range(4):
            A('ds_write2_b32 %s, %s, %s offset0:%d offset1:%d' % (v(vA1), v(vO + 4 * e + r), v(vO + 4 * e + 4 + r), 8 * r + e, 8 * r + e + 1))
    A('s_waitcnt lgkmcnt(0)')
    A('s_barrier')
    if ts:
        A('s_mov_b64 exec, -1')
        A('s_branch L_tsout')
    A('s_endpgm')
    C('hand the accumulators to the helper after the last foreign unit of this wave')
    lab('L_dump')
    A('s_mul_i32 %s, %s, %d' % (sT, sW, DUMP))
    A('v_lshrrev_b32 v1, 4, v0')
    A('v_add_lshl_u32 v1, v1, v0, 4')
    A('v_add_u32 v1, %s, v1' % sT)
    A('s_add_u32 %s, %s, %d' % (sT, sT, FD + 8 * ESTR))
    A('v_lshl_add_u32 v2, v0, 3, %s' % sT)
    A('s_nop 4')
    for e in range(8):
        A('ds_write_b128 v1, %s offset:%d' % (vr(vO + 4 * e, 4), FD + ESTR * e))
    A('ds_write2_b32 v2, %s, %s offset0:0 offset1:1' % (v(vMc), v(vL)))
    A('v_mov_b32 v1, %d' % CNT)
    A('v_lshlrev_b32 v2, %s, 1' % sW)
    A('s_waitcnt lgkmcnt(0)')
    A('s_mov_b64 exec, 1')
    A('ds_or_b32 v1, v2')
    A('s_mov_b64 exec, -1')
    reset_acc()
    stamp(4)
    A('s_branch L_nodump')
    lab('L_redo')
    C('the guess was wrong: fetch the real first unit')
    A('s_waitcnt vmcnt(0)')
    A('s_mov_b32 %s, %s' % (sOA, sT))
    A('s_mov_b32 %s, %s' % (sOB, sT2))
    loadK(win=False)
    loadV(0, H)
    A('s_branch L_loop')
    lab('L_helper')
    vBT = 116; vNon = 132
    A('s_memrealtime s[48:49]')
    if 'noprio' not in dbg: A('s_setprio 3')
    if ts: A('s_mov_b32 %s, 7' % sW)
    A('v_lshlrev_b32 v1, 3, v0')
    srd_tail(rBT, 4096); srd_tail(rX, 32)
    A('v_and_b32 v18, 7, v0')
    A('v_lshrrev_b32 v19, 3, v0')
    A('v_lshlrev_b32 v6, 2, v18')
    A('v_lshlrev_b32 v7, 2, v19')
    A('v_mov_b32 v2, %d' % CNT)
    A('v_mov_b32 v4, 0')
    A('v_mov_b32 v5, 0')
    A('ds_write_b64 v2, v[4:5]')
    A('s_waitcnt lgkmcnt(0)')
    if ts: A('v_writelane_b32 %s, s100, 0' % v(vTS))
    srd_base(rBT, pbt); srd_base(rX, pctx)
    A('buffer_load_dword v20, v6, %s, 0 offen' % srd(rX))
    A('buffer_load_dword v21, v7, %s, 0 offen' % srd(rX))
    for b in range(8):
        A('buffer_load_dwordx2 %s, v1, %s, 0 offen offset:%d' % (vr(vBT + 2 * b, 2), srd(rBT), 512 * b))
    mk_srd(rY, pdbg, 256)
    if LD:
        C('tag of this launch for this head: owner 0 picks it and leaves it in d_debug (which starts at zero)')
        A('s_mul_i32 s48, s48, 0x9e3779b1')
        A('s_or_b32 %s, s48, 1' % sTag)
        A('s_lshl_b32 %s, %s, %d' % (sCen, sH, 2 if 'ld4' in dbg else 3))
        A('s_cmp_lg_u32 %s, 0' % sI)
        A('s_cbranch_scc1 L_notag')
        A('v_mov_b32 %s, %s' % (v(vNon), sTag))
        A('s_mov_b64 exec, 1')
        A('buffer_store_dword %s, off, %s, %s%s' % (v(vNon), srd(rY), sCen, '' if 'stp' in dbg else ' sc1'))
        A('s_mov_b64 exec, -1')
        A('s_waitcnt vmcnt(9)')
        lab('L_notag')
    else:
        C('tag of this launch for this head: first arriver wins (d_debug starts at zero)')
        A('s_mul_i32 s48, s48, 0x9e3779b1')
        A('s_or_b32 s48, s48, 1')
        A('v_mov_b32 %s, s48' % v(vNon))
        A('v_mov_b32 %s, 0' % v(vNon + 1))
        A('s_lshl_b32 %s, %s, 2' % (sT3, sH))
        A('s_mov_b64 exec, 1')
        if 'noatom' in dbg: A('s_mov_b32 s48, 0x1234567'); A('buffer_load_dword v132, off, %s, %s' % (srd(rY), sT3))
        else: A('buffer_atomic_cmpswap %s, off, %s, %s %ssc0 sc1' % (vr(vNon, 2), srd(rY), sT3, 'offset:128 ' if 'dd' in dbg else ''))
        A('s_mov_b64 exec, -1')
        A('s_mov_b32 %s, s48' % sTag)
    A('v_add_u32 v1, %d, v1' % FD)
    RED = ('quad_perm:[1,0,3,2]', 'quad_perm:[2,3,0,1]', 'row_half_mirror')
    def red8(op, r):
        for ctl in RED:
            A('s_nop 1')
            A('%s_dpp %s, %s, %s %s %s' % (op, r, r, r, ctl, DPP))
    A('v_mov_b32 v22, 0x800')
    A('s_waitcnt vmcnt(%d)' % (8 if LD else 9))
    C('lane = 8 p + b.  ctx -> blocks (ctx <= 0 acts as 2048; clamp to 2048): v20 by b, v21 by p')
    A('v_cmp_lt_i32 %s, 0, v20' % MA)
    A('v_cmp_lt_i32 %s, 0, v21' % MB)
    A('v_min_i32 v20, v20, v22')
    A('v_min_i32 v21, v21, v22')
    A('v_cndmask_b32 v20, v22, v20, %s' % MA)
    A('v_cndmask_b32 v21, v22, v21, %s' % MB)
    for r in ('v20', 'v21'):
        A('v_add_u32 %s, 15, %s' % (r, r))
        A('v_lshrrev_b32 %s, 4, %s' % (r, r))
    A('v_mov_b32 v23, v20')
    red8('v_max_u32', 'v23')
    A('s_nop 0')
    A('v_readfirstlane_b32 %s, v23' % sS)
    stamp(1)
    if LD:
        A('s_cmp_lg_u32 %s, 0' % sI)
        A('s_cbranch_scc0 L_w1')
        A('s_waitcnt vmcnt(0)')
        lab('L_w1')
    A('s_waitcnt vmcnt(1)')
    stamp(17)
    for b in range(8):
        A('ds_write_b64 v1, %s offset:%d' % (vr(vBT + 2 * b, 2), 512 * b))
    C('S = length of the prefix of table columns on which all eight sequences agree')
    for st in range(2):
        r = lambda b: v(vBT + 2 * b + st)
        mx, mn = v(8 + 2 * st), v(8 + 2 * st + 1)
        A('v_max3_u32 %s, %s, %s, %s' % (mx, r(0), r(1), r(2)))
        A('v_min3_u32 %s, %s, %s, %s' % (mn, r(0), r(1), r(2)))
        A('v_max3_u32 %s, %s, %s, %s' % (mx, mx, r(3), r(4)))
        A('v_min3_u32 %s, %s, %s, %s' % (mn, mn, r(3), r(4)))
        A('v_max3_u32 %s, %s, %s, %s' % (mx, mx, r(5), r(6)))
        A('v_min3_u32 %s, %s, %s, %s' % (mn, mn, r(5), r(6)))
        A('v_max_u32 %s, %s, %s' % (mx, mx, r(7)))
        A('v_min_u32 %s, %s, %s' % (mn, mn, r(7)))
        A('v_cmp_ne_u32 %s, %s, %s' % ((MA, MB)[st], mx, mn))
    A('s_nop 1')
    A('s_ff1_i32_b64 %s, %s' % (sT, MA))
    A('s_ff1_i32_b64 %s, %s' % (sT2, MB))
    A('s_lshl_b32 %s, %s, 1' % (sT, sT))
    A('s_lshl1_add_u32 %s, %s, 1' % (sT2, sT2))
    A('s_min_u32 %s, %s, %s' % (sS, sS, sT))
    A('s_min_u32 %s, %s, %s' % (sS, sS, sT2))
    C('private blocks n, quota Q = ceil((S + sum n) / 8)')
    for r in ('v20', 'v21'):
        A('v_subrev_u32 %s, %s, %s' % (r, sS, r))
        A('v_max_i32 %s, 0, %s' % (r, r))
    A('v_mov_b32 v24, v20')
    red8('v_add_u32', 'v24')
    A('v_add3_u32 v24, v24, %s, 7' % sS)
    A('v_lshrrev_b32 v25, 3, v24')
    A('v_min_u32 v26, v20, v25')
    A('v_min_u32 v27, v21, v25')
    A('v_sub_u32 v24, v25, v26')
    A('v_sub_u32 v25, v25, v27')
    A('v_sub_u32 v20, v20, v26')
    C('pool = shared blocks, then the excess; takers are served in falling order of spare room')
    A('v_lshlrev_b32 v22, 3, v24')
    A('v_lshlrev_b32 v23, 3, v25')
    A('v_sub_u32 v22, v22, v18')
    A('v_sub_u32 v23, v23, v19')
    A('v_cmp_gt_i32 %s, v22, v23' % MA)
    A('v_cmp_lt_u32 %s, v18, v19' % MB)
    A('v_lshlrev_b32 v23, 16, v20')
    A('v_cndmask_b32 v22, 0, v24, %s' % MA)
    A('v_cndmask_b32 v23, 0, v23, %s' % MB)
    A('v_or_b32 v22, v22, v23')
    red8('v_add_u32', 'v22')
    A('v_lshlrev_b32 v21, 5, v18')
    A('v_lshrrev_b32 v23, 16, v22')
    A('v_and_b32 v22, 0xffff, v22')
    A('ds_bpermute_b32 v28, v21, v23')
    A('v_readlane_b32 %s, v23, 56' % sT)
    A('v_readlane_b32 %s, v20, 7' % sT2)
    A('s_lshl_b32 %s, %s, 3' % (sT3, sI))
    A('s_add_u32 %s, %s, %s' % (sPn, sT, sT2))
    A('s_add_u32 %s, %s, %s' % (sPn, sPn, sS))
    A('v_sub_u32 v29, %s, v22' % sPn)
    A('v_med3_i32 v29, v29, 0, v25')
    A('v_readlane_b32 %s, v22, %s' % (sOff, sT3))
    A('v_readlane_b32 %s, v27, %s' % (sOwn, sT3))
    A('v_readlane_b32 %s, v29, %s' % (sF, sT3))
    C('excess map: entry e of the excess = table index 128 b + j of that block; lane 8 t + b writes step t of row b')
    A('v_lshl_add_u32 v30, v18, 7, v26')
    A('v_add3_u32 v30, v30, %s, v19' % sS)
    A('v_mov_b32 v31, v19')
    A('s_waitcnt lgkmcnt(0)')
    A('v_add_lshl_u32 v32, v28, v19, 2')
    lab('L_exc')
    A('v_cmp_lt_u32 vcc, v31, v20')
    A('v_add_u32 v31, 8, v31')
    A('s_mov_b64 exec, vcc')
    A('ds_write_b32 v32, v30 offset:%d' % EXC)
    A('s_mov_b64 exec, -1')
    A('v_cmp_lt_u32 vcc, v31, v20')
    A('v_add_u32 v30, 8, v30')
    A('v_add_u32 v32, 32, v32')
    A('s_cbranch_vccnz L_exc')
    A('s_add_u32 %s, %s, %s' % (sU, sF, sOwn))
    if ts:
        for k, r in ((12, sS), (13, sOff), (14, sF), (15, sU)):
            A('v_writelane_b32 %s, %s, %d' % (v(vTS), r, k))
    A('v_mov_b32 v1, v0')
    A('s_lshl_b32 %s, %s, 7' % (sT, sI))
    A('s_add_u32 %s, %s, %s' % (sT, sT, sS))
    A('v_mov_b32 v12, %s' % sT)
    A('v_mov_b32 v13, 576')
    A('s_mov_b32 %s, 3' % sK)
    stamp(19)
    lab('L_items')
    C('table slot x = 8 R + 2 w + s holds list item 8 R + 4 s + w : (byte offset, 16 j | code | flags)')
    A('v_and_b32 v10, -8, v1')
    A('v_bfe_u32 v2, v1, 1, 2')
    A('v_add_u32 v10, v10, v2')
    A('v_and_b32 v2, 1, v1')
    A('v_lshl_add_u32 v11, v2, 2, v10')
    A('v_add_u32 v2, %s, v11' % sOff)
    A('v_subrev_u32 v3, %s, v2' % sS)
    A('v_and_b32 v4, 0x3ff, v3')
    A('v_lshlrev_b32 v4, 2, v4')
    A('ds_read_b32 v4, v4 offset:%d' % EXC)
    A('v_cmp_gt_i32 %s, 0, v3' % MJ[0])
    A('v_subrev_u32 v6, %s, v11' % sF)
    A('v_cmp_gt_u32 %s, %s, v11' % (MJ[1], sF))
    A('v_cmp_gt_u32 %s, %s, v6' % (MJ[3], sOwn))
    A('v_add_u32 v6, v12, v6')
    A('s_or_b64 %s, %s, %s' % (MJ[3], MJ[3], MJ[1]))
    A('s_and_b64 %s, %s, %s' % (MJ[2], MJ[0], MJ[1]))
    A('s_waitcnt lgkmcnt(0)')
    A('v_cndmask_b32 v4, v4, v2, %s' % MJ[0])
    A('v_cndmask_b32 v4, v6, v4, %s' % MJ[1])
    A('v_bfe_u32 v3, v4, 7, 3')
    A('v_and_b32 v5, 127, v4')
    A('v_cndmask_b32 v3, v3, 8, %s' % MJ[2])
    A('v_and_b32 v4, 0x3ff, v4')
    A('v_lshlrev_b32 v4, 2, v4')
    A('ds_read_b32 v8, v4 offset:%d' % FD)
    A('v_lshl_add_u32 v9, v5, 4, v3')
    A('v_mov_b32 v6, 0x40000000')
    A('v_cndmask_b32 v9, v6, v9, %s' % MJ[3])
    A('v_add_u32 v3, 8, v10')
    A('v_add_u32 v4, %d, v10' % (8 * TRIGREM))
    A('v_cmp_le_u32 %s, %s, v3' % (MJ[0], sU))
    A('v_cmp_le_u32 %s, %s, v4' % (MJ[1], sU))
    A('v_cmp_le_u32 %s, %s, v3' % (MJ[2], sF))
    A('v_cmp_gt_u32 vcc, %s, v10' % sF)
    A('s_and_b64 %s, %s, vcc' % (MJ[2], MJ[2]))
    for m, f in ((MJ[0], F_LAST), (MJ[1], F_TRIG), (MJ[2], F_DUMP)):
        A('v_or_b32 v2, 0x%x, v9' % (1 << f))
        A('v_cndmask_b32 v9, v9, v2, %s' % m)
    A('v_lshlrev_b32 v2, 3, v1')
    A('v_add_u32 v1, 64, v1')
    A('s_waitcnt lgkmcnt(0)')
    A('v_cndmask_b32 v8, v13, v8, %s' % MJ[3])
    A('v_lshlrev_b32 v8, 17, v8')
    A('ds_write_b64 v2, v[8:9] offset:%d' % ITEMS)
    A('s_add_u32 %s, %s, 7' % (sT, sU))
    A('v_readfirstlane_b32 %s, v1' % sT2)
    A('s_sub_u32 %s, %s, 1' % (sK, sK))
    A('s_cbranch_scc1 L_itdone')
    A('s_cmp_lt_u32 %s, %s' % (sT2, sT))
    A('s_cbranch_scc1 L_items')
    lab('L_itdone')
    stamp(20)
    A('s_waitcnt lgkmcnt(0)')
    A('s_barrier')
    stamp(11)
    if 'nopub' in dbg:
        A('s_barrier')
        if ts: A('s_branch L_tsout')
        A('s_endpgm')
    mk_srd(rWS, pws, WS_USED)
    mk_srd(rX, pout, 65536)
    C('row (producer p, column b) is published iff p holds shared blocks or excess of b, p != b')
    A('v_add_u32 v28, %s, v28' % sS)
    A('v_add_u32 v30, v22, v29')
    A('v_cmp_gt_u32 %s, v30, v28' % MA)
    A('v_add_u32 v28, v28, v20')
    A('v_cmp_lt_u32 %s, 0, v20' % MB)
    A('s_and_b64 %s, %s, %s' % (MA, MA, MB))
    A('v_cmp_lt_u32 %s, v22, v28' % MB)
    A('s_and_b64 %s, %s, %s' % (MA, MA, MB))
    A('v_cmp_gt_u32 %s, %s, v22' % (MB, sS))
    A('s_or_b64 %s, %s, %s' % (MA, MA, MB))
    A('v_cmp_lt_u32 %s, 0, v29' % MB)
    A('s_and_b64 %s, %s, %s' % (MA, MA, MB))
    A('v_cmp_ne_u32 %s, v18, v19' % MB)
    A('s_and_b64 %s, %s, %s' % (EX, MA, MB))
    if LD:
        A('s_cmp_eq_u32 %s, 0' % sI)
        A('s_cbranch_scc1 L_tagok')
        A('s_mov_b32 %s, 0' % sK)
        A('s_mov_b64 exec, 1')
        if 'ldp' in dbg:
            A('buffer_load_dword %s, off, %s, %s' % (v(vNon), srd(rY), sCen))
            A('s_branch L_tag1')
        lab('L_tag')
        A('buffer_load_dword %s, off, %s, %s sc1' % (v(vNon), srd(rY), sCen))
        lab('L_tag1')
        A('s_add_u32 %s, %s, 1' % (sK, sK))
        A('s_waitcnt vmcnt(0)')
        A('v_readfirstlane_b32 %s, %s' % (sTag, v(vNon)))
        A('s_nop 1')
        A('s_cmp_lg_u32 %s, 0' % sTag)
        A('s_cbranch_scc1 L_tagin')
        A('s_cmp_ge_u32 %s, 0x4000' % sK)
        A('s_cbranch_scc1 L_tagin')
        A('s_sleep 32')
        A('s_branch L_tag')
        lab('L_tagin')
        A('s_mov_b64 exec, -1')
        if ts == 1: A('v_writelane_b32 %s, %s, 22' % (v(vTS), sK))
        stamp(18)
        lab('L_tagok')
    else:
        A('s_waitcnt vmcnt(0)')
        A('v_readfirstlane_b32 %s, %s' % (sT, v(vNon)))
        A('s_nop 1')
        A('s_cmp_eq_u32 %s, 0' % sT)
        A('s_cselect_b32 %s, %s, %s' % (sTag, sTag, sT))
    A('v_mov_b32 %s, %s' % (v(vNon), sTag))
    C('census: every owner of this head notes (tag, XCD) in its slot of one line')
    A('s_getreg_b32 %s, hwreg(HW_REG_XCC_ID, 0, 4)' % sXc)
    A('s_lshl_b32 %s, %s, 7' % (sCen, sH))
    A('s_add_u32 %s, %s, %d' % (sCen, sCen, WS_C))
    A('s_lshl3_add_u32 %s, %s, %s' % (sT, sI, sCen))
    A('v_mov_b32 %s, %s' % (v(vNon + 1), sXc))
    A('s_mov_b64 exec, 1')
    A('buffer_store_dwordx2 %s, off, %s, %s' % (vr(vNon, 2), srd(rWS), sT))
    A('s_mov_b64 exec, -1')
    hA, hM, hL, hW, hX, hY = 52, 68, 72, 76, 84, 116
    A('v_lshrrev_b32 v1, 5, v0')
    A('v_and_b32 v2, 31, v0')
    A('s_cmp_eq_u32 %s, 0' % sF)
    A('s_cbranch_scc1 L_nopub')
    C('merge of the foreign dumps: register group q, half wave hf -> column 2 q + hf, lane c -> d = 4 c .. 4 c + 3')
    for r in range(16):
        A('v_mov_b32 %s, 0' % v(hA + r))
    for q in range(4):
        A('v_mov_b32 %s, 0x%08x' % (v(hM + q), SENT_MC))
        A('v_mov_b32 %s, 0' % v(hL + q))
    A('v_lshrrev_b32 v3, 3, v2')
    A('v_lshlrev_b32 v4, 4, v3')
    A('v_lshl_add_u32 v4, v1, 1, v4')
    A('v_lshlrev_b32 v9, 4, v1')
    A('v_add_lshl_u32 v4, v4, v3, 4')
    A('v_bfe_u32 v5, v2, 1, 2')
    A('v_lshl_add_u32 v4, v5, 2, v4')
    A('v_and_b32 v5, 1, v2')
    A('v_mul_u32_u24 v5, %d, v5' % (4 * ESTR))
    A('v_add_u32 v5, v4, v5')
    A('v_add_u32 v5, %d, v5' % FD)
    for k in range(1, 4):
        A('v_add_u32 v%d, %d, v5' % (5 + k, ESTR * k))
    A('s_min_u32 %s, %s, %d' % (sUf, sF, NS))
    C('fixed order (last wave first: it has the fewest foreign units)')
    A('v_mov_b32 v10, %d' % CNT)
    lab('L_next')
    A('s_sub_u32 %s, %s, 1' % (sUf, sUf))
    lab('L_spin1')
    A('ds_read_b32 v11, v10')
    A('s_waitcnt lgkmcnt(0)')
    A('v_readfirstlane_b32 %s, v11' % sT)
    A('s_nop 1')
    A('s_bitcmp1_b32 %s, %s' % (sT, sUf))
    A('s_cbranch_scc1 L_mrg')
    A('s_sleep %d' % (12 if 'ls' in dbg else 3))
    A('s_branch L_spin1')
    lab('L_mrg')
    stamp(3)
    A('s_cmp_lg_u32 %s, 0' % sUf)
    A('s_cbranch_scc1 L_nocen')
    A('v_lshlrev_b32 v138, 3, v0')
    A('s_mov_b64 exec, 0xff')
    A('buffer_load_dwordx2 v[136:137], v138, %s, %s offen%s' % (srd(rWS), sCen, '' if 'cenp' in dbg else ' sc1'))
    A('s_mov_b64 exec, -1')
    lab('L_nocen')
    A('s_mul_i32 %s, %s, %d' % (sT, sUf, DUMP))
    for k in range(5):
        A('v_add_u32 v%d, %s, v%d' % (13 + k, sT, 5 + k))
    for q in range(4):
        A('ds_read_b128 %s, v17 offset:%d' % (vr(hY + 4 * q, 4), FD + 8 * ESTR + 32 * q))
    for q in range(4):
        for k in range(4):
            A('ds_read2_b32 %s, v%d offset0:%d offset1:%d' % (vr(hX + 8 * q + 2 * k, 2), 13 + k, 16 * q, 16 * q + 4))
    A('s_waitcnt lgkmcnt(15)')
    for q in range(4):
        m0, l0, m1, l1 = [v(hY + 4 * q + t) for t in range(4)]
        A('v_max3_f32 v12, %s, %s, %s' % (v(hM + q), m0, m1))
        A('v_sub_f32 %s, %s, v12' % (v(hW + q), v(hM + q)))
        A('v_sub_f32 %s, %s, v12' % (m0, m0))
        A('v_sub_f32 %s, %s, v12' % (m1, m1))
        A('v_exp_f32 %s, %s' % (v(hW + q), v(hW + q)))
        A('v_exp_f32 %s, %s' % (m0, m0))
        A('v_exp_f32 %s, %s' % (m1, m1))
        A('v_mov_b32 %s, v12' % v(hM + q))
        A('v_mul_f32 %s, %s, %s' % (v(hL + q), v(hL + q), v(hW + q)))
        A('v_fmac_f32 %s, %s, %s' % (v(hL + q), m0, l0))
        A('v_fmac_f32 %s, %s, %s' % (v(hL + q), m1, l1))
        for k in range(4):
            A('v_mul_f32 %s, %s, %s' % (v(hA + 4 * q + k), v(hA + 4 * q + k), v(hW + q)))
    A('s_waitcnt lgkmcnt(0)')
    for q in range(4):
        for k in range(4):
            A('v_fmac_f32 %s, %s, %s' % (v(hA + 4 * q + k), v(hY + 4 * q), v(hX + 8 * q + 2 * k)))
            A('v_fmac_f32 %s, %s, %s' % (v(hA + 4 * q + k), v(hY + 4 * q + 2), v(hX + 8 * q + 2 * k + 1)))
    A('s_cmp_lg_u32 %s, 0' % sUf)
    A('s_cbranch_scc1 L_next')
    stamp(2)
    C('the low byte of every published float carries one byte of the tag')
    for k in range(4):
        A('s_mov_b32 %s, 0x%08x' % (sT, 0x07060500 + k))
        for q in range(4):
            A('v_perm_b32 %s, %s, %s, %s' % (v(hA + 4 * q + k), v(hA + 4 * q + k), v(vNon), sT))
    A('v_lshlrev_b32 v6, 3, v1')
    A('v_add_u32 v6, %d, v6' % MLS)
    for q in range(4):
        A('ds_write2_b32 v6, %s, %s offset0:%d offset1:%d' % (v(hM + q), v(hL + q), 4 * q, 4 * q + 1))
    C('publish the rows (h, b, i) that somebody waits for, and (m, l) of the eight columns as one line')
    A('s_lshl_b32 %s, %s, 3' % (sT, sI))
    A('s_lshr_b64 %s, %s, %s' % (MA, EX, sT))
    A('v_lshrrev_b32 v4, v1, s86')
    A('v_lshlrev_b32 v5, 12, v1')
    A('v_lshl_add_u32 v5, v2, 4, v5')
    A('v_mov_b32 v9, 0x40000000')
    A('s_lshl_b32 %s, %s, 6' % (sT, sH))
    A('s_add_u32 %s, %s, %s' % (sT, sT, sI))
    A('s_lshl_b32 %s, %s, 9' % (sT, sT))
    A('s_lshl_b32 %s, %s, 3' % (sT3, sH))
    A('s_add_u32 %s, %s, %s' % (sT3, sT3, sI))
    A('s_lshl_b32 %s, %s, 7' % (sT3, sT3))
    A('s_add_u32 %s, %s, %d' % (sT3, sT3, WS_P))
    for q in range(4):
        A('v_and_b32 v10, %d, v4' % (1 << (2 * q)))
        A('v_cmp_ne_u32 vcc, 0, v10')
        A('v_add_u32 v%d, %d, v5' % (13 + q, 8192 * q))
        A('s_nop 0')
        A('v_cndmask_b32 v%d, v9, v%d, vcc' % (13 + q, 13 + q))
    A('v_lshlrev_b32 v7, 3, v0')
    A('v_cmp_gt_u32 vcc, 8, v0')
    A('v_lshlrev_b32 v17, 4, v0')
    A('v_min_u32 v7, 56, v7')
    A('v_cndmask_b32 v17, v9, v17, vcc')
    A('s_waitcnt lgkmcnt(0)')
    A('ds_read_b64 v[8:9], v7 offset:%d' % MLS)
    A('v_mov_b32 v10, %s' % v(vNon))
    A('v_mov_b32 v11, %s' % v(vNon))
    C('all eight owners on this XCD: the rows may stay in its L2; otherwise write them through')
    A('s_waitcnt vmcnt(0) lgkmcnt(0)')
    A('v_cmp_eq_u32 %s, %s, v136' % (MB, sTag))
    A('v_cmp_eq_u32 vcc, %s, v137' % sXc)
    A('v_mov_b32 v134, v8')
    A('v_mov_b32 v135, v9')
    A('s_and_b32 %s, s88, vcc_lo' % sT2)
    A('s_and_b32 %s, %s, 0xff' % (sT2, sT2))
    A('s_cmp_eq_u32 %s, 0xff' % sT2)
    if ts == 1:
        A('s_cselect_b32 s100, 1, 0')
        A('v_writelane_b32 %s, s100, 21' % v(vTS))
    A('s_cbranch_scc0 L_st1')
    for sc in ('', ' sc1'):
        if sc: lab('L_st1')
        for q in range(4):
            if 'norows' in dbg and q >= NR: continue
            A('buffer_store_dwordx4 %s, v%d, %s, %s offen%s' % (vr(hA + 4 * q, 4), 13 + q, srd(rWS), sT, sc))
        A('buffer_store_dwordx4 v[8:11], v17, %s, %s offen%s' % (srd(rWS), sT3, sc))
        if not sc: A('s_branch L_nopub')
    lab('L_nopub')
    stamp(4)
    C('gather addresses: group q, half hf -> producer 2 q + hf (rows of absent producers are pushed out of range)')
    A('s_lshr_b64 %s, %s, %s' % (MA, EX, sI))
    A('v_lshlrev_b32 v3, 4, v0')
    A('v_lshlrev_b32 v4, 3, v1')
    A('v_lshrrev_b32 v18, v4, s86')
    A('v_lshrrev_b32 v19, v4, s87')
    A('v_mov_b32 v20, 0x40000000')
    for q in range(4):
        A('v_and_b32 v21, 0x%x, %s' % (1 << (16 * (q & 1)), 'v18' if q < 2 else 'v19'))
        A('v_cmp_ne_u32 %s, 0, v21' % MJ[q])
        A('v_add_u32 v%d, %d, v3' % (24 + q, 1024 * q))
        A('s_nop 0')
        A('v_cndmask_b32 v%d, v20, v%d, %s' % (24 + q, 24 + q, MJ[q]))
    A('v_lshlrev_b32 v4, 3, v0')
    A('v_lshrrev_b64 v[18:19], v4, %s' % MA)
    A('v_and_b32 v4, 1, v18')
    A('v_cmp_gt_u32 %s, 8, v0' % MB)
    A('v_cmp_ne_u32 vcc, 0, v4')
    A('v_lshlrev_b32 v28, 7, v0')
    A('s_and_b64 %s, %s, vcc' % (MB, MB))
    A('v_cndmask_b32 v28, v20, v28, %s' % MB)
    A('s_lshl_b32 %s, %s, 3' % (sT, sH))
    A('s_add_u32 %s, %s, %s' % (sT2, sT, sI))
    A('s_lshl_b32 %s, %s, 12' % (sT2, sT2))
    A('s_lshl_b32 %s, %s, 7' % (sT, sT))
    A('s_lshl4_add_u32 %s, %s, %s' % (sT, sI, sT))
    A('s_add_u32 %s, %s, %d' % (sT, sT, WS_P))
    A('s_mov_b32 s86, 0'); A('s_mov_b32 s87, -1')
    A('s_mov_b32 s56, 0x0c0c0400'); A('s_mov_b32 s57, 0x04000c0c')
    C('LDS addresses of the own dumps: entry (w, par = half)')
    A('v_lshrrev_b32 v3, 3, v2')
    A('v_lshl_add_u32 v3, v1, 2, v3')
    A('v_mul_u32_u24 v3, 144, v3')
    A('v_and_b32 v4, 7, v2')
    A('v_lshl_add_u32 v3, v4, 4, v3')
    A('v_lshlrev_b32 v4, 3, v1')
    C('look at global memory only when the local stream is close to its end')
    A('v_mov_b32 v5, %d' % CNT)
    lab('L_spin3')
    A('ds_read_b32 v6, v5 offset:4')
    A('s_waitcnt lgkmcnt(0)')
    A('v_readfirstlane_b32 %s, v6' % sK)
    A('s_nop 1')
    A('s_cmp_ge_u32 %s, 1' % sK)
    A('s_cbranch_scc1 L_go')
    A('s_sleep %d' % (12 if 'ls' in dbg else 4))
    A('s_branch L_spin3')
    lab('L_go')
    stamp(10)
    C('fetch the tagged rows until every one of them carries the tag of this launch (bounded)')
    A('s_mov_b32 %s, 0' % sK)
    fO = 84
    lab('L_spin2')
    A('buffer_load_dwordx4 v[12:15], v28, %s, %s offen sc1' % (srd(rWS), sT))
    for q in range(4):
        A('buffer_load_dwordx4 %s, v%d, %s, %s offen sc1' % (vr(fO + 4 * q, 4), 24 + q, srd(rWS), sT2))
    A('s_add_u32 %s, %s, 1' % (sK, sK))
    A('s_waitcnt vmcnt(4)')
    A('v_cmp_ne_u32 vcc, %s, v14' % sTag)
    A('s_and_b64 s[58:59], vcc, %s' % MB)
    for q in range(4):
        A('s_waitcnt vmcnt(%d)' % (3 - q))
        A('v_perm_b32 v16, %s, %s, s56' % (v(fO + 4 * q + 1), v(fO + 4 * q)))
        A('v_perm_b32 v17, %s, %s, s57' % (v(fO + 4 * q + 3), v(fO + 4 * q + 2)))
        A('v_or_b32 v16, v16, v17')
        A('v_cmp_ne_u32 vcc, %s, v16' % sTag)
        A('s_and_b64 vcc, vcc, %s' % MJ[q])
        A('s_or_b64 s[58:59], s[58:59], vcc')
    A('s_cbranch_scc0 L_got')
    if 'norows' in dbg: A('s_branch L_got')
    A('s_cmp_ge_u32 %s, 0x4000' % sK)
    A('s_cbranch_scc1 L_got')
    A('s_sleep %d' % SLEEP)
    A('s_branch L_spin2')
    lab('L_got')
    stamp(5)
    if ts == 1: A('v_writelane_b32 %s, %s, 16' % (v(vTS), sK))
    A('v_mov_b32 v7, 0x%08x' % SENT_MC)
    A('v_cndmask_b32 v12, v7, v12, %s' % MB)
    C('the own column of the own foreign part never left the registers')
    A('s_cmp_eq_u32 %s, 0' % sF)
    A('s_cbranch_scc1 L_noown')
    A('v_cmp_eq_u32 vcc, %s, v0' % sI)
    A('v_subrev_u32 v8, v1, %s' % sI)
    A('s_nop 0')
    A('v_cndmask_b32 v12, v12, v134, vcc')
    A('v_cndmask_b32 v13, v13, v135, vcc')
    for q in range(4):
        A('v_cmp_eq_u32 vcc, %d, v8' % (2 * q))
        A('s_nop 1')
        for k in range(4):
            A('v_cndmask_b32 %s, %s, %s, vcc' % (v(fO + 4 * q + k), v(fO + 4 * q + k), v(hA + 4 * q + k)))
    lab('L_noown')
    A('v_mov_b32 v8, v12')
    red8('v_max_f32', 'v8')
    A('v_sub_f32 v12, v12, v8')
    A('v_exp_f32 v12, v12')
    A('v_readlane_b32 s52, v8, 0')
    A('v_mul_f32 v13, v12, v13')
    for p in range(8):
        A('v_readlane_b32 s%d, v12, %d' % (44 + p, p))
    red8('v_add_f32', 'v13')
    for q in range(4):
        A('v_mov_b32 v8, s%d' % (44 + 2 * q))
        A('v_mov_b32 v9, s%d' % (45 + 2 * q))
        A('v_cndmask_b32 %s, v8, v9, %s' % (v(hW + q), MA))
    A('v_readlane_b32 s53, v13, 0')
    for r in range(16):
        A('v_and_b32 %s, 0xffffff00, %s' % (v(fO + r), v(fO + r)))
    for k in range(4):
        A('v_mul_f32 %s, %s, %s' % (v(hA + k), v(hW), v(fO + k)))
    for q in range(1, 4):
        for k in range(4):
            A('v_fmac_f32 %s, %s, %s' % (v(hA + k), v(hW + q), v(fO + 4 * q + k)))
    A('v_mov_b32 v16, s53')
    A('v_cndmask_b32 v18, v16, 0, %s' % MA)
    A('s_lshl_b32 %s, %s, 5' % (sT, sI))
    A('s_add_u32 %s, %s, %s' % (sT, sT, sH))
    A('s_lshl_b32 %s, %s, 8' % (sT, sT))
    A('v_lshlrev_b32 v7, 3, v2')
    A('v_lshl_add_u32 v7, v1, 2, v7')
    if 'wbl2' in dbg:
        A('s_and_b32 %s, s2, 0xf8' % sT2)
        A('s_cmp_lg_u32 %s, 24' % sT2)
        A('s_cbranch_scc1 L_nowb')
        A('buffer_wbl2 sc1')
        lab('L_nowb')
    stamp(6)
    A('s_barrier')
    stamp(7)
    oM = 8; oX = 84
    for w in range(NS):
        A('ds_read_b64 %s, v4 offset:%d' % (vr(oM + 2 * w, 2), OWNML + 16 * w))
    for w in range(NS):
        A('ds_read_b128 %s, v3 offset:%d' % (vr(oX + 4 * w, 4), OWN + 1152 * w))
    A('s_waitcnt lgkmcnt(4)')
    A('v_max3_f32 v20, %s, %s, s52' % (v(oM), v(oM + 2)))
    A('v_max3_f32 v20, v20, %s, %s' % (v(oM + 4), v(oM + 6)))
    A('v_mov_b32 v21, v20')
    A('s_nop 1')
    A('v_permlane32_swap_b32 v21, v20')
    A('v_max_f32 v20, v21, v20')
    A('v_sub_f32 v16, s52, v20')
    for w in range(NS):
        A('v_sub_f32 %s, %s, v20' % (v(oM + 2 * w), v(oM + 2 * w)))
    A('v_exp_f32 v16, v16')
    for w in range(NS):
        A('v_exp_f32 %s, %s' % (v(oM + 2 * w), v(oM + 2 * w)))
    A('v_mul_f32 v18, v18, v16')
    A('v_pk_mul_f32 %s, %s, v[16:17] op_sel_hi:[1,0]' % (vr(hA, 2), vr(hA, 2)))
    A('v_pk_mul_f32 %s, %s, v[16:17] op_sel_hi:[1,0]' % (vr(hA + 2, 2), vr(hA + 2, 2)))
    for w in range(NS):
        A('v_fmac_f32 v18, %s, %s' % (v(oM + 2 * w), v(oM + 2 * w + 1)))
    A('s_waitcnt lgkmcnt(0)')
    A('v_mov_b32 v19, v18')
    for w in range(NS):
        for k in (0, 2):
            A('v_pk_fma_f32 %s, %s, %s, %s op_sel_hi:[1,0,1]' % (vr(hA + k, 2), vr(oX + 4 * w + k, 2), vr(oM + 2 * w, 2), vr(hA + k, 2)))
        if w == 0:
            A('v_permlane32_swap_b32 v19, v18')
            A('v_add_f32 v18, v18, v19')
            A('v_rcp_f32 v18, v18')
    A('s_nop 1')
    C('lower half keeps d = 4 c, 4 c + 1 ; upper half 4 c + 2, 4 c + 3')
    A('v_permlane32_swap_b32 %s, %s' % (v(hA), v(hA + 2)))
    A('v_permlane32_swap_b32 %s, %s' % (v(hA + 1), v(hA + 3)))
    A('v_pk_add_f32 %s, %s, %s' % (vr(hA, 2), vr(hA, 2), vr(hA + 2, 2)))
    A('v_pk_mul_f32 %s, %s, v[18:19] op_sel_hi:[1,0]' % (vr(hA, 2), vr(hA, 2)))
    A('v_cvt_pk_bf16_f32 v10, %s, %s' % (v(hA), v(hA + 1)))
    A('buffer_store_dword v10, v7, %s, %s offen%s' % (srd(rX), sT, ' sc0 sc1 nt' if 'oall' in dbg else ' sc1' if 'osc1' in dbg else ' nt' if 'ont' in dbg else ''))
    if ts:
        stamp(8)
        lab('L_tsout')
        A('s_waitcnt vmcnt(0)')
        stamp(9)
        mk_srd(rWS, pws, 0x2000000)
        A('s_lshl_b32 %s, s2, 3' % sT)
        A('s_add_u32 %s, %s, %s' % (sT, sT, sW))
        A('s_lshl_b32 %s, %s, 8' % (sT, sT))
        A('s_add_u32 %s, %s, 0x1000000' % (sT, sT))
        A('v_lshlrev_b32 v1, 2, v0')
        A('buffer_store_dword %s, v1, %s, %s offen' % (v(vTS), srd(rWS), sT))
        if 'dd' in dbg:
            mk_srd(rY, pdbg, 64)
            A('v_readlane_b32 s44, %s, 0' % v(vTS))
            for k, (a_, b_) in enumerate(((3, 17), (1, 20), (17, 6), (9, 9))):
                A('v_readlane_b32 s45, %s, %d' % (v(vTS), a_))
                A('v_readlane_b32 s46, %s, %d' % (v(vTS), b_))
                A('s_cmp_eq_u32 %s, 7' % sW)
                A('s_cselect_b32 s45, s46, s45')
                A('s_sub_u32 s45, s45, s44')
                A('v_mov_b32 v%d, s45' % (4 + k))
            A('s_cmp_eq_u32 %s, 7' % sW)
            A('s_cselect_b32 s47, 16, 0')
            A('s_cmp_eq_u32 %s, 0' % sW)
            A('s_cselect_b32 s46, 1, 0')
            A('s_cmp_eq_u32 %s, 7' % sW)
            A('s_cselect_b32 s46, 1, s46')
            A('s_cmp_eq_u32 s2, 28')
            A('s_cselect_b32 s45, 32, 1024')
            A('s_cmp_eq_u32 s2, 1')
            A('s_cselect_b32 s45, 0, s45')
            A('s_cmp_eq_u32 s46, 0')
            A('s_cselect_b32 s45, 1024, s45')
            A('s_add_u32 s47, s47, s45')
            A('s_mov_b64 exec, 1')
            A('buffer_store_dwordx4 v[4:7], off, %s, s47' % srd(rY))
    lab('L_end')
    A('s_endpgm')
    L.append('.p2align 7')
    L.append('.type L_guess,@object')
    lab('L_guess')
    t = usual_table()
    for x in t: L.append('    .long 0x%08x' % x)
    L.append('.size L_guess, %d' % (4 * len(t)))
    nv = vTS + 1 if ts else NV
    out = header + '; @launch grid=(256,1,1) block=(%d,1,1) lds=%d\n' % ((NS + 1) * 64, LDS)
    out += DOC
    out += '.amdgcn_target "amdgcn-amd-amdhsa--gfx950"\n.text\n.globl %s_kernel\n.p2align 8\n.type %s_kernel,@function\n' % (NAME, NAME)
    out += '\n'.join(L) + '\n'
    out += '''.section .rodata,"a"
.p2align 6
.amdhsa_kernel %s_kernel
  .amdhsa_next_free_vgpr %d
  .amdhsa_next_free_sgpr 102
  .amdhsa_accum_offset %d
  .amdhsa_group_segment_fixed_size 0
  .amdhsa_kernarg_size 64
  .amdhsa_user_sgpr_count 2
  .amdhsa_user_sgpr_kernarg_segment_ptr 1
  .amdhsa_system_sgpr_workgroup_id_x 1
.end_amdhsa_kernel
''' % (NAME, nv, (nv + 3) // 4 * 4)
    return out

def header():
    ref = open('cdna_kernels/%s.s.ref' % NAME).read().splitlines()
    h = []
    for l in ref:
        if l.startswith('; @launch'): break
        h.append(l)
    return '\n'.join(h) + '\n'

if __name__ == '__main__':
    import argparse
    ap = argparse.ArgumentParser()
    ap.add_argument('-o', default='cdna_kernels/%s.s' % NAME)
    ap.add_argument('--pol', default='nt')
    ap.add_argument('--ts', type=int, default=0)
    ap.add_argument('--trig', type=int, default=2)
    ap.add_argument('--dbg', default='')
    ap.add_argument('--tpos', type=int, default=0)
    ap.add_argument('--dfirst', action='store_true')
    ap.add_argument('--sleep', type=int, default=16)
    ap.add_argument('--w2', type=int, default=0)
    ap.add_argument('--wm', type=lambda x: int(x, 16), default=0xff)
    ap.add_argument('--xm', type=lambda x: int(x, 16), default=0xf0)
    ap.add_argument('--win', type=int, default=6)
    ap.add_argument('--head', type=int, default=6)
    ap.add_argument('--perm', type=lambda x: int(x, 16), default=0x73406152)
    a = ap.parse_args()
    pol = '' if a.pol == 'def' else a.pol.replace('_', ' ')
    open(a.o, 'w').write(gen(pol, a.ts, header(), a.trig, a.dbg, a.win, a.head, a.perm, a.sleep, a.tpos, a.dfirst, a.w2, a.wm, a.xm))
```

```python
import sys, struct
import numpy as np

NAME = 'standalone__paged_block_table_kv_radixattention__sampling'
KV_BYTES = 75497472
NS = 4
ESTR = 276 * 4
DUMP = 8 * ESTR + 512
ITEMS = 0
OWNML = 2048
CNT = OWNML + 64
MLS = CNT + 32
OWN = 2560
FD = OWN + 8 * 576
EXC = FD + 4096
LDS = FD + NS * DUMP
WS_P = 32 * 8 * 8 * 512
WS_C = WS_P + 32 * 8 * 128
WS_G = WS_C + 32 * 128
WS_L = WS_G + 32 * 128
WS_USED = WS_L + 16 * 128
F_DUMP, F_LAST, F_TRIG = 16, 17, 18

DOC = '''; ---------------------------------------------------------------------------------------------------
; ---------------------------------------------------------------------------------------------------
'''

def f32bits(x):
    return struct.unpack('<I', struct.pack('<f', x))[0]
C_SCALE = f32bits(128 ** -0.5 * 1.4426950408889634)
SENT_RAW = f32bits(-1e30)
SENT_MC = f32bits(float(np.float32(-1e30) * np.float32(128 ** -0.5 * 1.4426950408889634)))

def plan(bt, ctx):
    nb = [(min(c, 2048) + 15) // 16 if c > 0 else 128 for c in ctx]
    S = 0
    while S < max(nb) and all(bt[b][S] == bt[0][S] for b in range(8)): S += 1
    n = [max(x - S, 0) for x in nb]
    Q = (S + sum(n) + 7) >> 3
    own = [min(x, Q) for x in n]
    take = [Q - x for x in own]
    pool = [bt[0][j] for j in range(S)]
    for b in range(8): pool += [bt[b][S + y] for y in range(own[b], n[b])]
    key = [take[b] * 8 - b for b in range(8)]
    out = []
    for i in range(8):
        off = sum(take[b] for b in range(8) if key[b] > key[i])
        out.append((pool[off:off + take[i]], [bt[i][S + y] for y in range(own[i])]))
    return out

def usual_table():
    bt = [list(range(64)) + [64 + 64 * b + j for j in range(64)] for b in range(8)]
    ctx = [2048 - ((b + 1) * 2654435761) % 512 for b in range(8)]
    p = [f + o + [576] * 8 for f, o in plan(bt, ctx)]
    return [p[i][x] << 17 for i in range(8) for x in range(2 * NS)]

def gen(pol='nt', ts=0, header='', TRIGREM=2, dbg='', W=6, H=6, PERM=0x73406152, SLEEP=16, TPOS=0, DFIRST=False, W2=0, WM=0xff, XM=0xf0, CTL=None):
    L = []
    def A(s): L.append('    ' + s)
    def lab(s): L.append(s + ':')
    def C(s): L.append('    ; ' + s)
    def v(i): return 'v%d' % i
    def vr(i, n): return 'v[%d:%d]' % (i, i + n - 1)
    def srd(r): return 's[%d:%d]' % (r, r + 3)
    def srd_tail(r, nbytes):
        A('s_mov_b32 s%d, %d' % (r + 2, nbytes)); A('s_mov_b32 s%d, 0x20000' % (r + 3))
    def srd_base(r, p):
        A('s_mov_b32 s%d, s%d' % (r, p)); A('s_and_b32 s%d, s%d, 0xffff' % (r + 1, p + 1))
    def mk_srd(r, p, nbytes):
        srd_base(r, p); srd_tail(r, nbytes)
    LD = 'cas' not in dbg.split(',')
    CPF = 8 if 'cpf8' in dbg else 256 if 'cpfa' in dbg else 16
    Q3N = 3 if 'q33' in dbg else 6
    NR = 2 if 'half' in dbg else 0
    V0N = 1 if 'v01' in dbg else 2
    DPP = 'row_mask:0xf bank_mask:0xf'
    sW = 's3'
    pq, pk, pv, pbt, pctx, pout, pdbg, pws = 4, 6, 8, 10, 12, 14, 16, 18
    rK, rV, rBT, rX, rWS, rY = 20, 24, 28, 32, 36, 40
    sN, sCum = 44, 52
    sFl, sCA, sCB = 's44', 's45', 's48'
    OWNX = 's[50:51]'
    sH, sI, sH256, sS, sQ, sOff, sF, sK, sOwn, sU, sUf, sPn = ['s%d' % i for i in range(60, 72)]
    EX = 's[72:73]'; ODD = 's[74:75]'; BASE = 's[76:77]'
    selLo, selHi, sC = 's78', 's79', 's80'
    sXc, sCen = 's78', 's79'
    sOA, sOB, sDA, sDB, sT = 's81', 's82', 's83', 's84', 's85'
    sTag = sDB
    MA, MB = 's[86:87]', 's[88:89]'
    MJ = ['s[90:91]', 's[92:93]', 's[94:95]', 's[96:97]']
    sT2, sT3 = 's98', 's99'
    vKo = [8, 9]; vVo = [10, 11, 12, 13]
    vCtx, vNinf, vPm, vMr, vMc, vA1, vSo, vD, vLA, vLB = range(14, 24)
    vP, vQ, vS, vO, vK, vV, vL, vOne, vA2 = 24, 28, 36, 52, 84, 116, 148, 152, 156
    NV = 157
    vTS = 158
    def stamp(idx):
        if ts == 1 or (ts and idx == 9):
            A('s_memrealtime s[100:101]')
            A('s_waitcnt lgkmcnt(0)')
            A('v_writelane_b32 %s, s100, %d' % (v(vTS), idx))
    def stampk(off):
        if ts == 1:
            A('s_memrealtime s[100:101]')
            A('s_lshl_b32 m0, %s, 1' % sK)
            A('s_add_u32 m0, m0, %d' % (16 - 4 + off))
            A('s_waitcnt lgkmcnt(0)')
            A('v_writelane_b32 %s, s100, m0' % v(vTS))
    nw = [0]
    KP = 5 if 'kp5' in dbg else 4 if 'kp4' in dbg else 0
    inloop = [False]
    VW = 8 if 'vw8' in dbg else 7 if 'vw7' in dbg else 14 if 'vwf' in dbg else 0
    def window(k):
        if CTL:
            nw[0] += 1
            A('s_cbranch_vccnz L_win%d' % nw[0])
            A('s_waitcnt vmcnt(%d)' % (W - 1))
            lab('L_win%d' % nw[0])
            A('s_waitcnt vmcnt(%d)' % (CTL[0] - 1))
            return
        if W2 and (WM >> k) & 1:
            nw[0] += 1
            A('s_cbranch_vccnz L_win%d' % nw[0])
            A('s_waitcnt vmcnt(%d)' % (W2 - 1))
            lab('L_win%d' % nw[0])
        A('s_waitcnt vmcnt(%d)' % (W - 1))
    def loadK(lo=0, hi=8, win=True):
        for n in range(lo, hi):
            j, hf = n >> 1, n & 1
            if win and KP:
                if hf == 0: A('s_waitcnt vmcnt(%d)' % KP)
            elif win: window(n)
            A('buffer_load_dwordx4 %s, %s, %s, %s offen offset:%d %s' % (vr(vK + n * 4, 4), v(vKo[j & 1]), srd(rK), sOA if j < 2 else sOB, 128 * hf, pol))
    def loadV(lo=0, hi=8, cur=False):
        for i in range(lo, hi):
            so = (sCA if cur else sOA) if i < 4 else (sCB if cur else sOB)
            if VW and inloop[0]:
                nw[0] += 1
                A('s_cbranch_vccnz L_win%d' % nw[0])
                window(i)
                lab('L_win%d' % nw[0])
                if VW < 14: A('s_waitcnt vmcnt(%d)' % (VW - 1))
            else:
                window(i)
            A('buffer_load_dwordx4 %s, %s, %s, %s offen %s' % (vr(vV + i * 4, 4), v(vVo[i & 3]), srd(rV), so, pol))
    def reset_acc():
        for r in range(32):
            A('v_mov_b32 %s, 0' % v(vO + r))
        for r in range(4):
            A('v_mov_b32 %s, 0' % v(vL + r))
        A('v_mov_b32 %s, 0x%08x' % (v(vMr), SENT_RAW))
        A('v_mov_b32 %s, 0x%08x' % (v(vMc), SENT_MC))

    lab(NAME + '_kernel')
    A('s_cmp_ge_u32 s2, 256')
    A('s_cbranch_scc1 L_end')
    A('s_load_dwordx16 s[4:19], s[0:1], 0')
    C('first round guessed from the usual table layout; checked against the real list below')
    A('s_getpc_b64 s[46:47]')
    lab('L_pc')
    A('s_and_b32 %s, s2, 56' % sT)
    A('s_lshl2_add_u32 %s, %s, L_guess-L_pc' % (sT, sT))
    A('s_load_dwordx8 s[52:59], s[46:47], %s' % sT)
    if ts:
        A('v_mov_b32 %s, 0' % v(vTS))
        A('s_memrealtime s[100:101]')
    if 'cpf' in dbg:
        C('pull the code of this kernel into L2 before the streams fill the memory queues')
        A('s_cmp_ge_u32 s2, %d' % CPF)
        A('s_cbranch_scc1 L_nocpf')
        A('v_lshlrev_b32 v2, 7, v0')
        A('v_cmp_gt_u32 vcc, L_guess-L_pc, v2')
        A('s_and_saveexec_b64 s[44:45], vcc')
        A('s_cbranch_execz L_cpf2')
        A('global_load_dword v3, v2, s[46:47]')
        lab('L_cpf2')
        A('s_mov_b64 exec, s[44:45]')
        lab('L_nocpf')
    A('v_lshrrev_b32 v1, 6, v0')
    A('v_and_b32 v0, 63, v0')
    A('v_readfirstlane_b32 %s, v1' % sW)
    C('owner i = (wg >> 3) & 7 of head h = perm(wg & 7) + 8 (wg >> 6): the eight owners of a head are neighbours')
    A('s_and_b32 %s, s2, 7' % sH)
    A('s_lshl_b32 %s, %s, 2' % (sH, sH))
    A('s_lshr_b32 %s, 0x%08x, %s' % (sH, PERM, sH))
    A('s_and_b32 %s, %s, 7' % (sH, sH))
    A('s_lshr_b32 %s, s2, 6' % sT)
    if 'crev' in dbg: A('s_xor_b32 %s, %s, 3' % (sT, sT))
    A('s_lshl3_add_u32 %s, %s, %s' % (sH, sT, sH))
    MAPS = {'m1': [3, 0, 1, 2, 4], 'm2': [0, 3, 1, 2, 4], 'm3': [0, 1, 3, 2, 4], 'm4': [0, 1, 3, 4, 2], 'm5': [3, 0, 1, 4, 2], 'm6': [0, 3, 4, 1, 2]}
    for k_, bits in MAPS.items():
        if k_ in dbg.split(','):
            A('s_mov_b32 %s, 0' % sT2)
            for o, src in enumerate(bits):
                A('s_bfe_u32 %s, %s, 0x%x' % (sT, sH, 0x10000 | src))
                A('s_lshl_b32 %s, %s, %d' % (sT, sT, o))
                A('s_or_b32 %s, %s, %s' % (sT2, sT2, sT))
            A('s_mov_b32 %s, %s' % (sH, sT2))
    A('s_bfe_u32 %s, s2, 0x30003' % sI)
    A('s_lshl_b32 %s, %s, 8' % (sH256, sH))
    A('s_cmp_eq_u32 %s, 0' % sW)
    A('s_cbranch_scc1 L_helper')
    if CTL:
        A('s_cmp_eq_u32 %s, %d' % (sW, NS + 1))
        A('s_cbranch_scc1 L_ctl')
    A('s_sub_u32 %s, %s, 1' % (sW, sW))
    A('s_mov_b32 m0, %s' % sW)
    C('lane = 16 G + 2 t + par.  K / Q: row t, bytes (2 G + par) 16 ; V: row 2 G, bytes (lane & 15) 16')
    A('v_lshrrev_b32 v2, 4, v0')
    A('v_bfe_u32 v4, v0, 1, 3')
    A('v_and_b32 v5, 1, v0')
    A('v_lshl_add_u32 %s, v4, 13, %s' % (v(vKo[0]), sH256))
    A('v_lshl_add_u32 %s, v2, 5, %s' % (v(vKo[0]), v(vKo[0])))
    A('v_lshl_add_u32 %s, v5, 4, %s' % (v(vKo[0]), v(vKo[0])))
    A('v_add_u32 %s, 0x10000, %s' % (v(vKo[1]), v(vKo[0])))
    srd_tail(rK, KV_BYTES)
    if 'qf' in dbg: srd_tail(rX, 65536)
    A('s_waitcnt lgkmcnt(0)')
    if ts: A('v_writelane_b32 %s, s100, 0' % v(vTS))
    A('s_movrels_b32 %s, s52' % sOA)
    A('s_movrels_b32 %s, s56' % sOB)
    srd_base(rK, pk)
    if 'qf' in dbg:
        srd_base(rX, pq)
        A('buffer_load_dwordx4 %s, %s, %s, 0 offen' % (vr(vQ, 4), v(vKo[0]), srd(rX)))
        A('buffer_load_dwordx4 %s, %s, %s, 0 offen offset:128' % (vr(vQ + 4, 4), v(vKo[0]), srd(rX)))
    stamp(3)
    if 'probeK' in dbg:
        A('buffer_load_dword v36, off, %s, %s nt' % (srd(rK), sOA))
        A('s_waitcnt vmcnt(0)'); stamp(6)
        mk_srd(rV, pv, KV_BYTES)
        A('buffer_load_dword v36, off, %s, %s nt' % (srd(rV), sOA))
        A('s_waitcnt vmcnt(0)'); stamp(7)
        loadK(win=False)
        A('s_waitcnt vmcnt(7)'); stamp(8)
        A('s_waitcnt vmcnt(4)'); stamp(10)
        A('s_waitcnt vmcnt(0)'); stamp(11)
    if 'probe1' in dbg:
        loadK(0, 1, win=False)
        A('s_waitcnt vmcnt(0)'); stamp(6)
        loadK(1, 2, win=False)
        A('s_waitcnt vmcnt(0)'); stamp(7)
        loadK(2, 8, win=False)
        A('s_waitcnt vmcnt(5)'); stamp(8)
        A('s_waitcnt vmcnt(3)'); stamp(10)
        A('s_waitcnt vmcnt(0)'); stamp(11)
    if 'vt1' in dbg:
        srd_base(rV, pv)
        loadK(0, 1, win=False)
        A('buffer_load_dword v36, off, %s, %s' % (srd(rV), sOA))
        loadK(1, 8, win=False)
    else:
        loadK(win=False)
    mk_srd(rX, pq, 65536); mk_srd(rY, pctx, 32); mk_srd(rV, pv, KV_BYTES)
    A('v_and_b32 v3, 15, v0')
    A('v_lshl_add_u32 %s, v2, 14, %s' % (v(vVo[0]), sH256))
    A('v_lshl_add_u32 %s, v3, 4, %s' % (v(vVo[0]), v(vVo[0])))
    A('v_add_u32 %s, 0x2000, %s' % (v(vVo[1]), v(vVo[0])))
    A('v_add_u32 %s, 0x10000, %s' % (v(vVo[2]), v(vVo[0])))
    A('v_add_u32 %s, 0x12000, %s' % (v(vVo[3]), v(vVo[0])))
    A('v_lshlrev_b32 v6, 2, v4')
    if 'vt2' in dbg:
        A('buffer_load_dword v36, off, %s, %s' % (srd(rV), sOA))
    if 'qf' not in dbg:
        A('buffer_load_dwordx4 %s, %s, %s, 0 offen' % (vr(vQ, 4), v(vKo[0]), srd(rX)))
        A('buffer_load_dwordx4 %s, %s, %s, 0 offen offset:128' % (vr(vQ + 4, 4), v(vKo[0]), srd(rX)))
    A('buffer_load_dword %s, v6, %s, 0 offen' % (v(vCtx), srd(rY)))
    A('s_mov_b32 s74, 0xaaaaaaaa'); A('s_mov_b32 s75, 0xaaaaaaaa')
    A('s_mov_b32 s76, 0x00030003'); A('s_mov_b32 s77, 0x00030003')
    A('s_mov_b32 %s, 0x05040100' % selLo); A('s_mov_b32 %s, 0x07060302' % selHi)
    A('s_mov_b32 %s, 0x%08x' % (sC, C_SCALE))
    A('v_mov_b32 %s, 0xff800000' % v(vNinf))
    A('v_mov_b32 v7, 0xffff0000')
    A('v_mov_b32 %s, 0xffff' % v(vPm))
    A('v_cndmask_b32 %s, %s, v7, %s' % (v(vPm), v(vPm), ODD))
    A('v_lshl_add_u32 v7, v2, 1, v5')
    for r in range(4):
        A('v_mov_b32 %s, 0x3f803f80' % v(vOne + r))
    C('addresses of the own dump: entry 2 w + par')
    A('s_lshl_b32 %s, %s, 1' % (sT, sW))
    A('v_add_u32 v3, %s, v5' % sT)
    A('v_lshlrev_b32 %s, 3, v3' % v(vA2))
    A('v_add_u32 %s, %d, %s' % (v(vA2), OWNML, v(vA2)))
    A('v_lshl_add_u32 v3, v3, 2, v2')
    A('v_mul_u32_u24 %s, 144, v3' % v(vA1))
    A('v_add_u32 %s, %d, %s' % (v(vA1), OWN, v(vA1)))
    A('s_lshl_b32 %s, %s, 1' % (sT2, sI))
    A('s_lshl_b64 %s, %s, %s' % (OWNX, BASE, sT2))
    C('item table address of lane k: slot 2 w + 8 (k >> 1) + (k & 1)')
    A('v_lshrrev_b32 v1, 1, v0')
    A('v_mad_u32_u24 v1, v1, %d, %s' % (2 * NS, sT))
    A('v_add_lshl_u32 v1, v1, v5, 3')
    reset_acc()
    def setv():
        if CTL: A('s_mov_b64 vcc, 0')
        if W2:
            A('s_and_b32 %s, s2, 7' % sT3)
            A('s_bitcmp1_b32 0x%x, %s' % (XM, sT3))
            A('s_cselect_b64 vcc, -1, 0')
    setv()
    A('s_mov_b32 %s, 0' % sK)
    if 'v0' in dbg:
        for i in range(V0N):
            A('buffer_load_dwordx4 %s, %s, %s, %s offen %s' % (vr(vV + i * 4, 4), v(vVo[i & 3]), srd(rV), sOA if i < 4 else sOB, pol))
        loadV(V0N, H)
    elif 'noq3' not in dbg:
        for i in range(H):
            A('s_waitcnt vmcnt(%d)' % (W - 1 + (3 if i < Q3N else 0)))
            A('buffer_load_dwordx4 %s, %s, %s, %s offen %s' % (vr(vV + i * 4, 4), v(vVo[i & 3]), srd(rV), sOA if i < 4 else sOB, pol))
    else:
        loadV(0, H)
    stamp(2)
    A('s_barrier')
    stamp(1)
    A('ds_read_b64 %s, v1 offset:%d' % (vr(vSo, 2), ITEMS))
    A('s_waitcnt vmcnt(%d)' % H)
    C('ctx fix-up per lane; ctx <= 0 masks every key in the reference, i.e. uniform weights: q = 0, ctx = 2048')
    A('v_cmp_lt_i32 vcc, 0, %s' % v(vCtx))
    A('v_mov_b32 v2, 0x800')
    A('v_min_i32 %s, %s, v2' % (v(vCtx), v(vCtx)))
    A('v_cndmask_b32 %s, v2, %s, vcc' % (v(vCtx), v(vCtx)))
    for r in range(8):
        A('v_cndmask_b32 %s, 0, %s, vcc' % (v(vQ + r), v(vQ + r)))
    A('v_sub_u32 %s, %s, v7' % (v(vCtx), v(vCtx)))
    setv()
    A('s_waitcnt lgkmcnt(0)')
    A('v_readlane_b32 %s, %s, 0' % (sT, v(vSo)))
    A('v_readlane_b32 %s, %s, 1' % (sT2, v(vSo)))
    A('s_nop 1')
    A('s_xor_b32 s46, %s, %s' % (sT, sOA))
    A('s_xor_b32 s47, %s, %s' % (sT2, sOB))
    A('s_or_b32 s46, s46, s47')
    A('s_cbranch_scc1 L_redo')
    lab('L_loop')
    A('s_add_u32 %s, %s, 1' % (sT, sK))
    A('s_add_u32 %s, %s, 2' % (sT2, sK))
    A('s_add_u32 %s, %s, 3' % (sT3, sK))
    A('s_mov_b32 %s, %s' % (sCA, sOA))
    A('s_mov_b32 %s, %s' % (sCB, sOB))
    A('v_readlane_b32 %s, %s, %s' % (sDA, v(vD), sK))
    A('v_readlane_b32 %s, %s, %s' % (sDB, v(vD), sT))
    A('v_readlane_b32 %s, %s, %s' % (sOA, v(vSo), sT2))
    A('v_readlane_b32 %s, %s, %s' % (sOB, v(vSo), sT3))
    A('s_mov_b32 %s, %s' % (sK, sT2))
    A('s_mov_b32 %s, %s' % (sFl, sDA))
    def trigger():
        C('tell the helper that the local stream is close to its end')
        A('s_bitcmp0_b32 %s, %d' % (sFl, F_TRIG))
        A('s_cbranch_scc1 L_nt')
        A('v_mov_b32 v1, %d' % CNT)
        A('v_mov_b32 v4, 1')
        A('ds_write_b32 v1, v4 offset:4')
        lab('L_nt')
    if TPOS == 0: trigger()
    if CTL:
        A('v_mov_b32 v1, %d' % CNT)
        A('ds_read_b32 v3, v1 offset:12')
        A('s_cmp_lg_u32 %s, 0' % sW)
        A('s_cbranch_scc1 L_np')
        A('v_mov_b32 v2, %s' % sK)
        A('ds_write_b32 v1, v2 offset:8')
        lab('L_np')
    inloop[0] = True
    if VW:
        A('s_bitcmp1_b32 %s, %d' % (sFl, F_LAST if 'vl' in dbg else F_TRIG))
        A('s_cselect_b64 vcc, -1, 0')
    C('validity of the 4 x 8 keys per column: member of the block and position < ctx')
    for (d, m, lim) in ((sDA, MA, vLA), (sDB, MB, vLB)):
        A('s_and_b32 %s, %s, 7' % (sT, d))
        A('s_lshl_b32 %s, %s, 1' % (sT, sT))
        A('s_lshl_b64 %s, %s, %s' % (m, BASE, sT))
        A('s_bitcmp1_b32 %s, 3' % d)
        A('s_cselect_b64 %s, -1, %s' % (m, m))
        A('s_and_b32 %s, %s, 0x400007f0' % (d, d))
        A('v_subrev_u32 %s, %s, %s' % (v(lim), d, v(vCtx)))
        A('v_cndmask_b32 %s, -1, %s, %s' % (v(lim), v(lim), m))
    A('v_cmp_lt_i32 %s, 0, %s' % (MJ[0], v(vLA)))
    A('v_cmp_lt_i32 %s, 8, %s' % (MJ[1], v(vLA)))
    A('v_cmp_lt_i32 %s, 0, %s' % (MJ[2], v(vLB)))
    A('v_cmp_lt_i32 %s, 8, %s' % (MJ[3], v(vLB)))
    if CTL:
        A('s_waitcnt lgkmcnt(0)')
        A('v_readfirstlane_b32 s49, v3')
        A('s_nop 1')
        A('s_bitcmp1_b32 s49, 0')
        A('s_cselect_b64 vcc, -1, 0')
    stampk(0)
    A('s_waitcnt vmcnt(%d)' % H)
    stampk(1)
    for hf in range(2):
        for j in range(4):
            d = vr(vS + 4 * j, 4)
            A('v_mfma_f32_16x16x32_bf16 %s, %s, %s, %s' % (d, vr(vK + (j * 2 + hf) * 4, 4), vr(vQ + 4 * hf, 4), '0' if hf == 0 else d))
    tail = list(range(H, 8))
    def vtail(last=False):
        if tail:
            i = tail.pop(0); loadV(i, i + 1, cur=True)
        while last and tail:
            i = tail.pop(0); loadV(i, i + 1, cur=True)
    vtail()
    A('s_nop 4')
    D = lambda j, r: v(vS + 4 * j + r)
    qp = 'quad_perm:[1,0,3,2] ' + DPP
    C('rows and columns both carry the chunk parity: add the two diagonal halves; even lane key 2 G, odd lane key 2 G + 1')
    for j in range(4):
        A('v_add_f32_dpp %s, %s, %s %s' % (D(j, 0), D(j, 1), D(j, 0), qp))
        A('v_add_f32_dpp %s, %s, %s %s' % (D(j, 3), D(j, 2), D(j, 3), qp))
    for j in range(4):
        A('v_cndmask_b32 %s, %s, %s, %s' % (D(j, 0), D(j, 0), D(j, 3), ODD))
    for j in range(4):
        A('v_cndmask_b32 %s, %s, %s, %s' % (D(j, 0), v(vNinf), D(j, 0), MJ[j]))
    C('running maximum of the column (over the four lane groups)')
    A('v_max3_f32 v1, %s, %s, %s' % (D(0, 0), D(1, 0), D(2, 0)))
    A('v_max3_f32 v1, v1, %s, %s' % (D(3, 0), v(vMr)))
    A('v_mov_b32 v2, v1')
    A('s_nop 1')
    A('v_permlane16_swap_b32 v2, v1')
    A('v_max_f32 v1, v2, v1')
    A('v_mov_b32 v2, v1')
    A('s_nop 1')
    A('v_permlane32_swap_b32 v2, v1')
    A('v_max_f32 %s, v2, v1' % v(vMr))
    vtail()
    A('v_mul_f32 v1, %s, %s' % (sC, v(vMr)))
    A('v_sub_f32 v2, %s, v1' % v(vMc))
    A('v_mov_b32 %s, v1' % v(vMc))
    A('v_exp_f32 v2, v2')
    for j in range(4):
        A('v_fma_f32 %s, %s, %s, -v1' % (D(j, 1), D(j, 0), sC))
    for j in range(4):
        A('v_exp_f32 %s, %s' % (D(j, 1), D(j, 1)))
    for r in range(0, 8, 2):
        A('v_pk_mul_f32 %s, %s, v[2:3] op_sel_hi:[1,0]' % (vr(vO + r, 2), vr(vO + r, 2)))
    for j in range(4):
        A('v_cvt_pk_bf16_f32 %s, %s, %s' % (v(vP + j), D(j, 1), D(j, 1)))
    A('v_mul_f32 %s, %s, v2' % (v(vL), v(vL)))
    for j in range(4):
        A('v_and_b32 %s, %s, %s' % (v(vP + j), v(vPm), v(vP + j)))
    vtail()
    for r in range(8, 32, 2):
        A('v_pk_mul_f32 %s, %s, v[2:3] op_sel_hi:[1,0]' % (vr(vO + r, 2), vr(vO + r, 2)))
    C('denominator: all-ones rows times P')
    A('v_mfma_f32_16x16x32_bf16 %s, %s, %s, %s' % (vr(vL, 4), vr(vOne, 4), vr(vP, 4), vr(vL, 4)))
    vtail(True)
    if TPOS == 1: trigger()
    stampk(2)
    A('s_bitcmp0_b32 %s, %d' % (sFl, F_LAST))
    A('s_cbranch_scc0 L_k1')
    loadK(0, H)
    A('s_waitcnt vmcnt(%d)' % H)
    A('s_branch L_k2')
    lab('L_k1')
    A('s_waitcnt vmcnt(0)')
    lab('L_k2')
    if TPOS == 2: trigger()
    stampk(3)
    if CTL:
        A('s_bitcmp1_b32 s49, 1')
        A('s_cselect_b64 vcc, -1, 0')
    if ts == 1 or TPOS == 2 or CTL: A('s_bitcmp0_b32 %s, %d' % (sFl, F_LAST))
    def perms(e):
        tb = vS + 4 * (e % 3)
        w = e >> 1
        for u in range(4):
            A('v_perm_b32 %s, %s, %s, %s' % (v(tb + u), v(vV + (2 * u + 1) * 4 + w), v(vV + (2 * u) * 4 + w), selHi if e & 1 else selLo))
    def pv_(e):
        tb = vS + 4 * (e % 3)
        A('v_mfma_f32_16x16x32_bf16 %s, %s, %s, %s' % (vr(vO + 4 * e, 4), vr(tb, 4), vr(vP, 4), vr(vO + 4 * e, 4)))
    ktail = list(range(H, 8))
    def kt():
        if ktail:
            n = ktail.pop(0)
            A('s_cbranch_scc0 L_kt%d' % n)
            if KP:
                ktail.pop(0); loadK(n, n + 2)
            else:
                loadK(n, n + 1)
            lab('L_kt%d' % n)
    C('V^T fragments by an in-lane 8 x 8 transpose; O^T tile e holds d = 32 G + 8 r + e')
    perms(0)
    for e in range(1, 8):
        perms(e)
        pv_(e - 1)
        if e in ((2,) if KP else (1, 4)): kt()
    A('s_nop 1')
    pv_(7)
    def next_loads():
        A('s_cbranch_scc0 L_v2')
        if ktail: loadK(ktail[0], 8)
        loadV(0, H)
        lab('L_v2')
    if not DFIRST: next_loads()
    A('s_bitcmp1_b32 %s, %d' % (sFl, F_DUMP))
    A('s_cbranch_scc1 L_dump')
    lab('L_nodump')
    if DFIRST:
        A('s_bitcmp0_b32 %s, %d' % (sFl, F_LAST))
        next_loads()
    A('s_bitcmp0_b32 %s, %d' % (sFl, F_LAST))
    A('s_cbranch_scc1 L_loop')
    inloop[0] = False
    stamp(5)
    C('own dump (lanes of column i), in d order')
    A('s_mov_b64 exec, %s' % OWNX)
    A('ds_write2_b32 %s, %s, %s offset0:0 offset1:1' % (v(vA2), v(vMc), v(vL)))
    for e in range(0, 8, 2):
        for r in range(4):
            A('ds_write2_b32 %s, %s, %s offset0:%d offset1:%d' % (v(vA1), v(vO + 4 * e + r), v(vO + 4 * e + 4 + r), 8 * r + e, 8 * r + e + 1))
    A('s_waitcnt lgkmcnt(0)')
    A('s_barrier')
    if ts:
        A('s_mov_b64 exec, -1')
        A('s_branch L_tsout')
    A('s_endpgm')
    C('hand the accumulators to the helper after the last foreign unit of this wave')
    lab('L_dump')
    A('s_mul_i32 %s, %s, %d' % (sT, sW, DUMP))
    A('v_lshrrev_b32 v1, 4, v0')
    A('v_add_lshl_u32 v1, v1, v0, 4')
    A('v_add_u32 v1, %s, v1' % sT)
    A('s_add_u32 %s, %s, %d' % (sT, sT, FD + 8 * ESTR))
    A('v_lshl_add_u32 v2, v0, 3, %s' % sT)
    A('s_nop 4')
    for e in range(8):
        A('ds_write_b128 v1, %s offset:%d' % (vr(vO + 4 * e, 4), FD + ESTR * e))
    A('ds_write2_b32 v2, %s, %s offset0:0 offset1:1' % (v(vMc), v(vL)))
    A('v_mov_b32 v1, %d' % CNT)
    A('v_lshlrev_b32 v2, %s, 1' % sW)
    A('s_waitcnt lgkmcnt(0)')
    A('s_mov_b64 exec, 1')
    A('ds_or_b32 v1, v2')
    A('s_mov_b64 exec, -1')
    reset_acc()
    stamp(4)
    A('s_branch L_nodump')
    lab('L_redo')
    C('the guess was wrong: fetch the real first unit')
    A('s_waitcnt vmcnt(0)')
    A('s_mov_b32 %s, %s' % (sOA, sT))
    A('s_mov_b32 %s, %s' % (sOB, sT2))
    loadK(win=False)
    loadV(0, H)
    A('s_branch L_loop')
    if CTL:
        WIDE, TH1, TH2, DLY = CTL
        lab('L_ctl')
        A('s_waitcnt lgkmcnt(0)')
        mk_srd(rWS, pws, WS_USED)
        A('s_getreg_b32 %s, hwreg(HW_REG_XCC_ID, 0, 3)' % sXc)
        A('s_lshl_b32 %s, %s, 2' % (sOA, sXc))
        A('s_add_u32 %s, %s, %d' % (sOA, sOA, WS_G))
        A('s_mov_b32 %s, %d' % (sOB, WS_G))
        A('s_lshl_b32 %s, %s, 7' % (sCen, sXc))
        A('s_add_u32 %s, %s, %d' % (sCen, sCen, WS_L))
        A('v_lshlrev_b32 v1, 2, v0')
        A('v_mov_b32 v3, %d' % CNT)
        A('v_lshrrev_b32 v2, 2, v0')
        A('s_lshr_b32 %s, %s, 2' % (sT, sXc))
        A('v_cmp_eq_u32 %s, %s, v2' % (MA, sT))
        A('s_mov_b32 %s, 2' % sK)
        A('s_mov_b64 exec, 0xff')
        A('s_barrier')
        lab('L_c1')
        A('ds_read2_b32 v[4:5], v3 offset0:1 offset1:2')
        A('s_waitcnt lgkmcnt(0)')
        A('v_readfirstlane_b32 %s, v4' % sT2)
        A('v_readfirstlane_b32 %s, v5' % sT)
        A('s_nop 1')
        A('s_cmp_ge_u32 %s, %s' % (sT, sK))
        A('s_cbranch_scc1 L_c2')
        A('s_cmp_lg_u32 %s, 0' % sT2)
        A('s_cbranch_scc1 L_end')
        A('s_sleep 2')
        A('s_branch L_c1')
        lab('L_c2')
        A('s_add_u32 %s, %s, 2' % (sK, sK))
        A('s_cmp_ge_u32 s2, 8')
        A('s_cbranch_scc1 L_c5')
        C('representative: note the time, wait a little, compare with the other XCDs of this half')
        A('s_memrealtime s[44:45]')
        A('s_waitcnt lgkmcnt(0)')
        A('v_mov_b32 v7, s44')
        A('s_mov_b64 exec, 1')
        A('buffer_store_dword v7, off, %s, %s sc1' % (srd(rWS), sOA))
        A('s_mov_b64 exec, 0xff')
        A('s_sleep %d' % DLY)
        A('buffer_load_dword v6, v1, %s, %s offen sc1' % (srd(rWS), sOB))
        A('s_add_u32 %s, %s, 128' % (sOA, sOA))
        A('s_add_u32 %s, %s, 128' % (sOB, sOB))
        A('s_waitcnt vmcnt(0)')
        C('entries of other launches fall outside the window; XCDs that have not arrived yet count as late')
        A('v_sub_u32 v6, s44, v6')
        A('v_add_u32 v8, 500, v6')
        A('v_cmp_gt_u32 vcc, 1000, v8')
        A('v_mov_b32 v8, %d' % (-DLY * 3))
        A('s_nop 0')
        A('v_cndmask_b32 v6, v8, v6, vcc')
        A('v_cndmask_b32 v6, 0, v6, %s' % MA)
        for ctl in ('quad_perm:[1,0,3,2]', 'quad_perm:[2,3,0,1]', 'row_half_mirror'):
            A('s_nop 1')
            A('v_add_u32_dpp v6, v6, v6 %s %s' % (ctl, DPP))
        A('s_nop 0')
        A('v_readfirstlane_b32 %s, v6' % sU)
        A('s_nop 1')
        A('s_cmp_gt_i32 %s, %d' % (sU, 4 * TH1))
        A('s_cselect_b32 %s, 1, 0' % sQ)
        A('s_cmp_gt_i32 %s, %d' % (sU, 4 * TH2))
        A('s_cselect_b32 %s, 3, %s' % (sQ, sQ))
        A('s_and_b32 s44, s44, -4')
        A('s_or_b32 s44, s44, %s' % sQ)
        A('v_mov_b32 v7, s44')
        A('s_mov_b64 exec, 1')
        A('buffer_store_dword v7, off, %s, %s' % (srd(rWS), sCen))
        A('s_mov_b64 exec, 0xff')
        A('s_branch L_c6')
        lab('L_c5')
        A('s_sleep %d' % (DLY + 40))
        A('s_memrealtime s[44:45]')
        A('s_mov_b64 exec, 1')
        A('buffer_load_dword v7, off, %s, %s sc1' % (srd(rWS), sCen))
        A('s_mov_b64 exec, 0xff')
        A('s_waitcnt vmcnt(0) lgkmcnt(0)')
        A('v_readfirstlane_b32 %s, v7' % sQ)
        A('s_nop 1')
        A('s_sub_u32 %s, s44, %s' % (sT, sQ))
        A('s_and_b32 %s, %s, 3' % (sQ, sQ))
        A('s_cmp_lt_u32 %s, 600' % sT)
        A('s_cselect_b32 %s, %s, 0' % (sQ, sQ))
        lab('L_c6')
        A('v_mov_b32 v4, %s' % sQ)
        A('ds_write_b32 v3, v4 offset:12')
        A('s_cmp_eq_u32 %s, 0' % sT2)
        A('s_cbranch_scc1 L_c1')
        A('s_endpgm')
    lab('L_helper')
    vBT = 116; vNon = 132
    A('s_memrealtime s[48:49]')
    if 'noprio' not in dbg: A('s_setprio 3')
    if ts: A('s_mov_b32 %s, 7' % sW)
    A('v_lshlrev_b32 v1, 3, v0')
    srd_tail(rBT, 4096); srd_tail(rX, 32)
    A('v_and_b32 v18, 7, v0')
    A('v_lshrrev_b32 v19, 3, v0')
    A('v_lshlrev_b32 v6, 2, v18')
    A('v_lshlrev_b32 v7, 2, v19')
    A('v_mov_b32 v2, %d' % CNT)
    A('v_mov_b32 v4, 0')
    A('v_mov_b32 v5, 0')
    A('ds_write_b64 v2, v[4:5]')
    if CTL: A('ds_write_b64 v2, v[4:5] offset:8')
    A('s_waitcnt lgkmcnt(0)')
    if ts: A('v_writelane_b32 %s, s100, 0' % v(vTS))
    srd_base(rBT, pbt); srd_base(rX, pctx)
    A('buffer_load_dword v20, v6, %s, 0 offen' % srd(rX))
    A('buffer_load_dword v21, v7, %s, 0 offen' % srd(rX))
    for b in range(8):
        A('buffer_load_dwordx2 %s, v1, %s, 0 offen offset:%d' % (vr(vBT + 2 * b, 2), srd(rBT), 512 * b))
    mk_srd(rY, pdbg, 256)
    if LD:
        C('tag of this launch for this head: owner 0 picks it and leaves it in d_debug (which starts at zero)')
        A('s_mul_i32 s48, s48, 0x9e3779b1')
        A('s_or_b32 %s, s48, 1' % sTag)
        A('s_lshl_b32 %s, %s, %d' % (sCen, sH, 2 if 'ld4' in dbg else 3))
        A('s_cmp_lg_u32 %s, 0' % sI)
        A('s_cbranch_scc1 L_notag')
        A('v_mov_b32 %s, %s' % (v(vNon), sTag))
        A('s_mov_b64 exec, 1')
        A('buffer_store_dword %s, off, %s, %s%s' % (v(vNon), srd(rY), sCen, '' if 'stp' in dbg else ' sc1'))
        A('s_mov_b64 exec, -1')
        A('s_waitcnt vmcnt(9)')
        lab('L_notag')
    else:
        C('tag of this launch for this head: first arriver wins (d_debug starts at zero)')
        A('s_mul_i32 s48, s48, 0x9e3779b1')
        A('s_or_b32 s48, s48, 1')
        A('v_mov_b32 %s, s48' % v(vNon))
        A('v_mov_b32 %s, 0' % v(vNon + 1))
        A('s_lshl_b32 %s, %s, 2' % (sT3, sH))
        A('s_mov_b64 exec, 1')
        if 'noatom' in dbg: A('s_mov_b32 s48, 0x1234567'); A('buffer_load_dword v132, off, %s, %s' % (srd(rY), sT3))
        else: A('buffer_atomic_cmpswap %s, off, %s, %s %ssc0 sc1' % (vr(vNon, 2), srd(rY), sT3, 'offset:128 ' if 'dd' in dbg else ''))
        A('s_mov_b64 exec, -1')
        A('s_mov_b32 %s, s48' % sTag)
    A('v_add_u32 v1, %d, v1' % FD)
    RED = ('quad_perm:[1,0,3,2]', 'quad_perm:[2,3,0,1]', 'row_half_mirror')
    def red8(op, r):
        for ctl in RED:
            A('s_nop 1')
            A('%s_dpp %s, %s, %s %s %s' % (op, r, r, r, ctl, DPP))
    A('v_mov_b32 v22, 0x800')
    A('s_waitcnt vmcnt(%d)' % (8 if LD else 9))
    C('lane = 8 p + b.  ctx -> blocks (ctx <= 0 acts as 2048; clamp to 2048): v20 by b, v21 by p')
    A('v_cmp_lt_i32 %s, 0, v20' % MA)
    A('v_cmp_lt_i32 %s, 0, v21' % MB)
    A('v_min_i32 v20, v20, v22')
    A('v_min_i32 v21, v21, v22')
    A('v_cndmask_b32 v20, v22, v20, %s' % MA)
    A('v_cndmask_b32 v21, v22, v21, %s' % MB)
    for r in ('v20', 'v21'):
        A('v_add_u32 %s, 15, %s' % (r, r))
        A('v_lshrrev_b32 %s, 4, %s' % (r, r))
    A('v_mov_b32 v23, v20')
    red8('v_max_u32', 'v23')
    A('s_nop 0')
    A('v_readfirstlane_b32 %s, v23' % sS)
    stamp(1)
    if LD:
        A('s_cmp_lg_u32 %s, 0' % sI)
        A('s_cbranch_scc0 L_w1')
        A('s_waitcnt vmcnt(0)')
        lab('L_w1')
    A('s_waitcnt vmcnt(1)')
    stamp(17)
    for b in range(8):
        A('ds_write_b64 v1, %s offset:%d' % (vr(vBT + 2 * b, 2), 512 * b))
    C('S = length of the prefix of table columns on which all eight sequences agree')
    for st in range(2):
        r = lambda b: v(vBT + 2 * b + st)
        mx, mn = v(8 + 2 * st), v(8 + 2 * st + 1)
        A('v_max3_u32 %s, %s, %s, %s' % (mx, r(0), r(1), r(2)))
        A('v_min3_u32 %s, %s, %s, %s' % (mn, r(0), r(1), r(2)))
        A('v_max3_u32 %s, %s, %s, %s' % (mx, mx, r(3), r(4)))
        A('v_min3_u32 %s, %s, %s, %s' % (mn, mn, r(3), r(4)))
        A('v_max3_u32 %s, %s, %s, %s' % (mx, mx, r(5), r(6)))
        A('v_min3_u32 %s, %s, %s, %s' % (mn, mn, r(5), r(6)))
        A('v_max_u32 %s, %s, %s' % (mx, mx, r(7)))
        A('v_min_u32 %s, %s, %s' % (mn, mn, r(7)))
        A('v_cmp_ne_u32 %s, %s, %s' % ((MA, MB)[st], mx, mn))
    A('s_nop 1')
    A('s_ff1_i32_b64 %s, %s' % (sT, MA))
    A('s_ff1_i32_b64 %s, %s' % (sT2, MB))
    A('s_lshl_b32 %s, %s, 1' % (sT, sT))
    A('s_lshl1_add_u32 %s, %s, 1' % (sT2, sT2))
    A('s_min_u32 %s, %s, %s' % (sS, sS, sT))
    A('s_min_u32 %s, %s, %s' % (sS, sS, sT2))
    C('private blocks n, quota Q = ceil((S + sum n) / 8)')
    for r in ('v20', 'v21'):
        A('v_subrev_u32 %s, %s, %s' % (r, sS, r))
        A('v_max_i32 %s, 0, %s' % (r, r))
    A('v_mov_b32 v24, v20')
    red8('v_add_u32', 'v24')
    A('v_add3_u32 v24, v24, %s, 7' % sS)
    A('v_lshrrev_b32 v25, 3, v24')
    A('v_min_u32 v26, v20, v25')
    A('v_min_u32 v27, v21, v25')
    A('v_sub_u32 v24, v25, v26')
    A('v_sub_u32 v25, v25, v27')
    A('v_sub_u32 v20, v20, v26')
    C('pool = shared blocks, then the excess; takers are served in falling order of spare room')
    A('v_lshlrev_b32 v22, 3, v24')
    A('v_lshlrev_b32 v23, 3, v25')
    A('v_sub_u32 v22, v22, v18')
    A('v_sub_u32 v23, v23, v19')
    A('v_cmp_gt_i32 %s, v22, v23' % MA)
    A('v_cmp_lt_u32 %s, v18, v19' % MB)
    A('v_lshlrev_b32 v23, 16, v20')
    A('v_cndmask_b32 v22, 0, v24, %s' % MA)
    A('v_cndmask_b32 v23, 0, v23, %s' % MB)
    A('v_or_b32 v22, v22, v23')
    red8('v_add_u32', 'v22')
    A('v_lshlrev_b32 v21, 5, v18')
    A('v_lshrrev_b32 v23, 16, v22')
    A('v_and_b32 v22, 0xffff, v22')
    A('ds_bpermute_b32 v28, v21, v23')
    A('v_readlane_b32 %s, v23, 56' % sT)
    A('v_readlane_b32 %s, v20, 7' % sT2)
    A('s_lshl_b32 %s, %s, 3' % (sT3, sI))
    A('s_add_u32 %s, %s, %s' % (sPn, sT, sT2))
    A('s_add_u32 %s, %s, %s' % (sPn, sPn, sS))
    A('v_sub_u32 v29, %s, v22' % sPn)
    A('v_med3_i32 v29, v29, 0, v25')
    A('v_readlane_b32 %s, v22, %s' % (sOff, sT3))
    A('v_readlane_b32 %s, v27, %s' % (sOwn, sT3))
    A('v_readlane_b32 %s, v29, %s' % (sF, sT3))
    C('excess map: entry e of the excess = table index 128 b + j of that block; lane 8 t + b writes step t of row b')
    A('v_lshl_add_u32 v30, v18, 7, v26')
    A('v_add3_u32 v30, v30, %s, v19' % sS)
    A('v_mov_b32 v31, v19')
    A('s_waitcnt lgkmcnt(0)')
    A('v_add_lshl_u32 v32, v28, v19, 2')
    lab('L_exc')
    A('v_cmp_lt_u32 vcc, v31, v20')
    A('v_add_u32 v31, 8, v31')
    A('s_mov_b64 exec, vcc')
    A('ds_write_b32 v32, v30 offset:%d' % EXC)
    A('s_mov_b64 exec, -1')
    A('v_cmp_lt_u32 vcc, v31, v20')
    A('v_add_u32 v30, 8, v30')
    A('v_add_u32 v32, 32, v32')
    A('s_cbranch_vccnz L_exc')
    A('s_add_u32 %s, %s, %s' % (sU, sF, sOwn))
    if ts:
        for k, r in ((12, sS), (13, sOff), (14, sF), (15, sU)):
            A('v_writelane_b32 %s, %s, %d' % (v(vTS), r, k))
    A('v_mov_b32 v1, v0')
    A('s_lshl_b32 %s, %s, 7' % (sT, sI))
    A('s_add_u32 %s, %s, %s' % (sT, sT, sS))
    A('v_mov_b32 v12, %s' % sT)
    A('v_mov_b32 v13, 576')
    A('s_mov_b32 %s, 3' % sK)
    stamp(19)
    lab('L_items')
    C('table slot x = 8 R + 2 w + s holds list item 8 R + 4 s + w : (byte offset, 16 j | code | flags)')
    A('v_and_b32 v10, -8, v1')
    A('v_bfe_u32 v2, v1, 1, 2')
    A('v_add_u32 v10, v10, v2')
    A('v_and_b32 v2, 1, v1')
    A('v_lshl_add_u32 v11, v2, 2, v10')
    A('v_add_u32 v2, %s, v11' % sOff)
    A('v_subrev_u32 v3, %s, v2' % sS)
    A('v_and_b32 v4, 0x3ff, v3')
    A('v_lshlrev_b32 v4, 2, v4')
    A('ds_read_b32 v4, v4 offset:%d' % EXC)
    A('v_cmp_gt_i32 %s, 0, v3' % MJ[0])
    A('v_subrev_u32 v6, %s, v11' % sF)
    A('v_cmp_gt_u32 %s, %s, v11' % (MJ[1], sF))
    A('v_cmp_gt_u32 %s, %s, v6' % (MJ[3], sOwn))
    if 'rev' in dbg.split(','):
        A('s_add_u32 %s, %s, 7' % (sT, sOwn))
        A('v_sub_u32 v14, %s, v6' % sT)
        A('v_cmp_le_u32 vcc, 8, v6')
        A('s_bitcmp1_b32 s2, 0')
        A('s_cselect_b64 vcc, vcc, 0')
        A('s_nop 1')
        A('v_cndmask_b32 v6, v6, v14, vcc')
    if 'rot' in dbg.split(','):
        A('s_and_b32 %s, s2, 7' % sT)
        A('s_mul_i32 %s, %s, %d' % (sT, sT, 3))
        A('s_sub_u32 %s, %s, 8' % (sT2, sOwn))
        A('v_add_u32 v14, %s, v6' % sT)
        A('v_subrev_u32 v15, %s, v14' % sT2)
        A('v_cmp_le_u32 vcc, %s, v14' % sOwn)
        A('s_nop 1')
        A('v_cndmask_b32 v14, v14, v15, vcc')
        A('v_cmp_le_u32 vcc, 8, v6')
        A('s_nop 1')
        A('v_cndmask_b32 v6, v6, v14, vcc')
    A('v_add_u32 v6, v12, v6')
    A('s_or_b64 %s, %s, %s' % (MJ[3], MJ[3], MJ[1]))
    A('s_and_b64 %s, %s, %s' % (MJ[2], MJ[0], MJ[1]))
    A('s_waitcnt lgkmcnt(0)')
    A('v_cndmask_b32 v4, v4, v2, %s' % MJ[0])
    A('v_cndmask_b32 v4, v6, v4, %s' % MJ[1])
    A('v_bfe_u32 v3, v4, 7, 3')
    A('v_and_b32 v5, 127, v4')
    A('v_cndmask_b32 v3, v3, 8, %s' % MJ[2])
    A('v_and_b32 v4, 0x3ff, v4')
    A('v_lshlrev_b32 v4, 2, v4')
    A('ds_read_b32 v8, v4 offset:%d' % FD)
    A('v_lshl_add_u32 v9, v5, 4, v3')
    A('v_mov_b32 v6, 0x40000000')
    A('v_cndmask_b32 v9, v6, v9, %s' % MJ[3])
    A('v_add_u32 v3, 8, v10')
    A('v_add_u32 v4, %d, v10' % (8 * TRIGREM))
    A('v_cmp_le_u32 %s, %s, v3' % (MJ[0], sU))
    A('v_cmp_le_u32 %s, %s, v4' % (MJ[1], sU))
    A('v_cmp_le_u32 %s, %s, v3' % (MJ[2], sF))
    A('v_cmp_gt_u32 vcc, %s, v10' % sF)
    A('s_and_b64 %s, %s, vcc' % (MJ[2], MJ[2]))
    for m, f in ((MJ[0], F_LAST), (MJ[1], F_TRIG), (MJ[2], F_DUMP)):
        A('v_or_b32 v2, 0x%x, v9' % (1 << f))
        A('v_cndmask_b32 v9, v9, v2, %s' % m)
    A('v_lshlrev_b32 v2, 3, v1')
    A('v_add_u32 v1, 64, v1')
    A('s_waitcnt lgkmcnt(0)')
    A('v_cndmask_b32 v8, v13, v8, %s' % MJ[3])
    A('v_lshlrev_b32 v8, 17, v8')
    A('ds_write_b64 v2, v[8:9] offset:%d' % ITEMS)
    A('s_add_u32 %s, %s, 7' % (sT, sU))
    A('v_readfirstlane_b32 %s, v1' % sT2)
    A('s_sub_u32 %s, %s, 1' % (sK, sK))
    A('s_cbranch_scc1 L_itdone')
    A('s_cmp_lt_u32 %s, %s' % (sT2, sT))
    A('s_cbranch_scc1 L_items')
    lab('L_itdone')
    stamp(20)
    A('s_waitcnt lgkmcnt(0)')
    A('s_barrier')
    stamp(11)
    if 'nopub' in dbg:
        A('s_barrier')
        if ts: A('s_branch L_tsout')
        A('s_endpgm')
    mk_srd(rWS, pws, WS_USED)
    mk_srd(rX, pout, 65536)
    C('row (producer p, column b) is published iff p holds shared blocks or excess of b, p != b')
    A('v_add_u32 v28, %s, v28' % sS)
    A('v_add_u32 v30, v22, v29')
    A('v_cmp_gt_u32 %s, v30, v28' % MA)
    A('v_add_u32 v28, v28, v20')
    A('v_cmp_lt_u32 %s, 0, v20' % MB)
    A('s_and_b64 %s, %s, %s' % (MA, MA, MB))
    A('v_cmp_lt_u32 %s, v22, v28' % MB)
    A('s_and_b64 %s, %s, %s' % (MA, MA, MB))
    A('v_cmp_gt_u32 %s, %s, v22' % (MB, sS))
    A('s_or_b64 %s, %s, %s' % (MA, MA, MB))
    A('v_cmp_lt_u32 %s, 0, v29' % MB)
    A('s_and_b64 %s, %s, %s' % (MA, MA, MB))
    A('v_cmp_ne_u32 %s, v18, v19' % MB)
    A('s_and_b64 %s, %s, %s' % (EX, MA, MB))
    if LD:
        A('s_cmp_eq_u32 %s, 0' % sI)
        A('s_cbranch_scc1 L_tagok')
        A('s_mov_b32 %s, 0' % sK)
        A('s_mov_b64 exec, 1')
        if 'ldp' in dbg:
            A('buffer_load_dword %s, off, %s, %s' % (v(vNon), srd(rY), sCen))
            A('s_branch L_tag1')
        lab('L_tag')
        A('buffer_load_dword %s, off, %s, %s sc1' % (v(vNon), srd(rY), sCen))
        lab('L_tag1')
        A('s_add_u32 %s, %s, 1' % (sK, sK))
        A('s_waitcnt vmcnt(0)')
        A('v_readfirstlane_b32 %s, %s' % (sTag, v(vNon)))
        A('s_nop 1')
        A('s_cmp_lg_u32 %s, 0' % sTag)
        A('s_cbranch_scc1 L_tagin')
        A('s_cmp_ge_u32 %s, 0x4000' % sK)
        A('s_cbranch_scc1 L_tagin')
        A('s_sleep 32')
        A('s_branch L_tag')
        lab('L_tagin')
        A('s_mov_b64 exec, -1')
        if ts == 1: A('v_writelane_b32 %s, %s, 22' % (v(vTS), sK))
        stamp(18)
        lab('L_tagok')
    else:
        A('s_waitcnt vmcnt(0)')
        A('v_readfirstlane_b32 %s, %s' % (sT, v(vNon)))
        A('s_nop 1')
        A('s_cmp_eq_u32 %s, 0' % sT)
        A('s_cselect_b32 %s, %s, %s' % (sTag, sTag, sT))
    A('v_mov_b32 %s, %s' % (v(vNon), sTag))
    C('census: every owner of this head notes (tag, XCD) in its slot of one line')
    A('s_getreg_b32 %s, hwreg(HW_REG_XCC_ID, 0, 4)' % sXc)
    A('s_lshl_b32 %s, %s, 7' % (sCen, sH))
    A('s_add_u32 %s, %s, %d' % (sCen, sCen, WS_C))
    A('s_lshl3_add_u32 %s, %s, %s' % (sT, sI, sCen))
    A('v_mov_b32 %s, %s' % (v(vNon + 1), sXc))
    A('s_mov_b64 exec, 1')
    A('buffer_store_dwordx2 %s, off, %s, %s' % (vr(vNon, 2), srd(rWS), sT))
    A('s_mov_b64 exec, -1')
    hA, hM, hL, hW, hX, hY = 52, 68, 72, 76, 84, 116
    A('v_lshrrev_b32 v1, 5, v0')
    A('v_and_b32 v2, 31, v0')
    A('s_cmp_eq_u32 %s, 0' % sF)
    A('s_cbranch_scc1 L_nopub')
    C('merge of the foreign dumps: register group q, half wave hf -> column 2 q + hf, lane c -> d = 4 c .. 4 c + 3')
    for r in range(16):
        A('v_mov_b32 %s, 0' % v(hA + r))
    for q in range(4):
        A('v_mov_b32 %s, 0x%08x' % (v(hM + q), SENT_MC))
        A('v_mov_b32 %s, 0' % v(hL + q))
    A('v_lshrrev_b32 v3, 3, v2')
    A('v_lshlrev_b32 v4, 4, v3')
    A('v_lshl_add_u32 v4, v1, 1, v4')
    A('v_lshlrev_b32 v9, 4, v1')
    A('v_add_lshl_u32 v4, v4, v3, 4')
    A('v_bfe_u32 v5, v2, 1, 2')
    A('v_lshl_add_u32 v4, v5, 2, v4')
    A('v_and_b32 v5, 1, v2')
    A('v_mul_u32_u24 v5, %d, v5' % (4 * ESTR))
    A('v_add_u32 v5, v4, v5')
    A('v_add_u32 v5, %d, v5' % FD)
    for k in range(1, 4):
        A('v_add_u32 v%d, %d, v5' % (5 + k, ESTR * k))
    A('s_min_u32 %s, %s, %d' % (sUf, sF, NS))
    C('fixed order (last wave first: it has the fewest foreign units)')
    A('v_mov_b32 v10, %d' % CNT)
    lab('L_next')
    A('s_sub_u32 %s, %s, 1' % (sUf, sUf))
    lab('L_spin1')
    A('ds_read_b32 v11, v10')
    A('s_waitcnt lgkmcnt(0)')
    A('v_readfirstlane_b32 %s, v11' % sT)
    A('s_nop 1')
    A('s_bitcmp1_b32 %s, %s' % (sT, sUf))
    A('s_cbranch_scc1 L_mrg')
    A('s_sleep %d' % (12 if 'ls' in dbg else 3))
    A('s_branch L_spin1')
    lab('L_mrg')
    stamp(3)
    A('s_cmp_lg_u32 %s, 0' % sUf)
    A('s_cbranch_scc1 L_nocen')
    A('v_lshlrev_b32 v138, 3, v0')
    A('s_mov_b64 exec, 0xff')
    A('buffer_load_dwordx2 v[136:137], v138, %s, %s offen%s' % (srd(rWS), sCen, '' if 'cenp' in dbg else ' sc1'))
    A('s_mov_b64 exec, -1')
    lab('L_nocen')
    A('s_mul_i32 %s, %s, %d' % (sT, sUf, DUMP))
    for k in range(5):
        A('v_add_u32 v%d, %s, v%d' % (13 + k, sT, 5 + k))
    for q in range(4):
        A('ds_read_b128 %s, v17 offset:%d' % (vr(hY + 4 * q, 4), FD + 8 * ESTR + 32 * q))
    for q in range(4):
        for k in range(4):
            A('ds_read2_b32 %s, v%d offset0:%d offset1:%d' % (vr(hX + 8 * q + 2 * k, 2), 13 + k, 16 * q, 16 * q + 4))
    A('s_waitcnt lgkmcnt(15)')
    for q in range(4):
        m0, l0, m1, l1 = [v(hY + 4 * q + t) for t in range(4)]
        A('v_max3_f32 v12, %s, %s, %s' % (v(hM + q), m0, m1))
        A('v_sub_f32 %s, %s, v12' % (v(hW + q), v(hM + q)))
        A('v_sub_f32 %s, %s, v12' % (m0, m0))
        A('v_sub_f32 %s, %s, v12' % (m1, m1))
        A('v_exp_f32 %s, %s' % (v(hW + q), v(hW + q)))
        A('v_exp_f32 %s, %s' % (m0, m0))
        A('v_exp_f32 %s, %s' % (m1, m1))
        A('v_mov_b32 %s, v12' % v(hM + q))
        A('v_mul_f32 %s, %s, %s' % (v(hL + q), v(hL + q), v(hW + q)))
        A('v_fmac_f32 %s, %s, %s' % (v(hL + q), m0, l0))
        A('v_fmac_f32 %s, %s, %s' % (v(hL + q), m1, l1))
        for k in range(4):
            A('v_mul_f32 %s, %s, %s' % (v(hA + 4 * q + k), v(hA + 4 * q + k), v(hW + q)))
    A('s_waitcnt lgkmcnt(0)')
    for q in range(4):
        for k in range(4):
            A('v_fmac_f32 %s, %s, %s' % (v(hA + 4 * q + k), v(hY + 4 * q), v(hX + 8 * q + 2 * k)))
            A('v_fmac_f32 %s, %s, %s' % (v(hA + 4 * q + k), v(hY + 4 * q + 2), v(hX + 8 * q + 2 * k + 1)))
    A('s_cmp_lg_u32 %s, 0' % sUf)
    A('s_cbranch_scc1 L_next')
    stamp(2)
    C('the low byte of every published float carries one byte of the tag')
    for k in range(4):
        A('s_mov_b32 %s, 0x%08x' % (sT, 0x07060500 + k))
        for q in range(4):
            A('v_perm_b32 %s, %s, %s, %s' % (v(hA + 4 * q + k), v(hA + 4 * q + k), v(vNon), sT))
    A('v_lshlrev_b32 v6, 3, v1')
    A('v_add_u32 v6, %d, v6' % MLS)
    for q in range(4):
        A('ds_write2_b32 v6, %s, %s offset0:%d offset1:%d' % (v(hM + q), v(hL + q), 4 * q, 4 * q + 1))
    C('publish the rows (h, b, i) that somebody waits for, and (m, l) of the eight columns as one line')
    A('s_lshl_b32 %s, %s, 3' % (sT, sI))
    A('s_lshr_b64 %s, %s, %s' % (MA, EX, sT))
    A('v_lshrrev_b32 v4, v1, s86')
    A('v_lshlrev_b32 v5, 12, v1')
    A('v_lshl_add_u32 v5, v2, 4, v5')
    A('v_mov_b32 v9, 0x40000000')
    A('s_lshl_b32 %s, %s, 6' % (sT, sH))
    A('s_add_u32 %s, %s, %s' % (sT, sT, sI))
    A('s_lshl_b32 %s, %s, 9' % (sT, sT))
    A('s_lshl_b32 %s, %s, 3' % (sT3, sH))
    A('s_add_u32 %s, %s, %s' % (sT3, sT3, sI))
    A('s_lshl_b32 %s, %s, 7' % (sT3, sT3))
    A('s_add_u32 %s, %s, %d' % (sT3, sT3, WS_P))
    for q in range(4):
        A('v_and_b32 v10, %d, v4' % (1 << (2 * q)))
        A('v_cmp_ne_u32 vcc, 0, v10')
        A('v_add_u32 v%d, %d, v5' % (13 + q, 8192 * q))
        A('s_nop 0')
        A('v_cndmask_b32 v%d, v9, v%d, vcc' % (13 + q, 13 + q))
    A('v_lshlrev_b32 v7, 3, v0')
    A('v_cmp_gt_u32 vcc, 8, v0')
    A('v_lshlrev_b32 v17, 4, v0')
    A('v_min_u32 v7, 56, v7')
    A('v_cndmask_b32 v17, v9, v17, vcc')
    A('s_waitcnt lgkmcnt(0)')
    A('ds_read_b64 v[8:9], v7 offset:%d' % MLS)
    A('v_mov_b32 v10, %s' % v(vNon))
    A('v_mov_b32 v11, %s' % v(vNon))
    C('all eight owners on this XCD: the rows may stay in its L2; otherwise write them through')
    A('s_waitcnt vmcnt(0) lgkmcnt(0)')
    A('v_cmp_eq_u32 %s, %s, v136' % (MB, sTag))
    A('v_cmp_eq_u32 vcc, %s, v137' % sXc)
    A('v_mov_b32 v134, v8')
    A('v_mov_b32 v135, v9')
    A('s_and_b32 %s, s88, vcc_lo' % sT2)
    A('s_and_b32 %s, %s, 0xff' % (sT2, sT2))
    A('s_cmp_eq_u32 %s, 0xff' % sT2)
    if ts == 1:
        A('s_cselect_b32 s100, 1, 0')
        A('v_writelane_b32 %s, s100, 21' % v(vTS))
    A('s_cbranch_scc0 L_st1')
    for sc in ('', ' sc1'):
        if sc: lab('L_st1')
        for q in range(4):
            if 'norows' in dbg and q >= NR: continue
            A('buffer_store_dwordx4 %s, v%d, %s, %s offen%s' % (vr(hA + 4 * q, 4), 13 + q, srd(rWS), sT, sc))
        A('buffer_store_dwordx4 v[8:11], v17, %s, %s offen%s' % (srd(rWS), sT3, sc))
        if not sc: A('s_branch L_nopub')
    lab('L_nopub')
    stamp(4)
    C('gather addresses: group q, half hf -> producer 2 q + hf (rows of absent producers are pushed out of range)')
    A('s_lshr_b64 %s, %s, %s' % (MA, EX, sI))
    A('v_lshlrev_b32 v3, 4, v0')
    A('v_lshlrev_b32 v4, 3, v1')
    A('v_lshrrev_b32 v18, v4, s86')
    A('v_lshrrev_b32 v19, v4, s87')
    A('v_mov_b32 v20, 0x40000000')
    for q in range(4):
        A('v_and_b32 v21, 0x%x, %s' % (1 << (16 * (q & 1)), 'v18' if q < 2 else 'v19'))
        A('v_cmp_ne_u32 %s, 0, v21' % MJ[q])
        A('v_add_u32 v%d, %d, v3' % (24 + q, 1024 * q))
        A('s_nop 0')
        A('v_cndmask_b32 v%d, v20, v%d, %s' % (24 + q, 24 + q, MJ[q]))
    A('v_lshlrev_b32 v4, 3, v0')
    A('v_lshrrev_b64 v[18:19], v4, %s' % MA)
    A('v_and_b32 v4, 1, v18')
    A('v_cmp_gt_u32 %s, 8, v0' % MB)
    A('v_cmp_ne_u32 vcc, 0, v4')
    A('v_lshlrev_b32 v28, 7, v0')
    A('s_and_b64 %s, %s, vcc' % (MB, MB))
    A('v_cndmask_b32 v28, v20, v28, %s' % MB)
    A('s_lshl_b32 %s, %s, 3' % (sT, sH))
    A('s_add_u32 %s, %s, %s' % (sT2, sT, sI))
    A('s_lshl_b32 %s, %s, 12' % (sT2, sT2))
    A('s_lshl_b32 %s, %s, 7' % (sT, sT))
    A('s_lshl4_add_u32 %s, %s, %s' % (sT, sI, sT))
    A('s_add_u32 %s, %s, %d' % (sT, sT, WS_P))
    A('s_mov_b32 s86, 0'); A('s_mov_b32 s87, -1')
    A('s_mov_b32 s56, 0x0c0c0400'); A('s_mov_b32 s57, 0x04000c0c')
    C('LDS addresses of the own dumps: entry (w, par = half)')
    A('v_lshrrev_b32 v3, 3, v2')
    A('v_lshl_add_u32 v3, v1, 2, v3')
    A('v_mul_u32_u24 v3, 144, v3')
    A('v_and_b32 v4, 7, v2')
    A('v_lshl_add_u32 v3, v4, 4, v3')
    A('v_lshlrev_b32 v4, 3, v1')
    C('look at global memory only when the local stream is close to its end')
    A('v_mov_b32 v5, %d' % CNT)
    lab('L_spin3')
    A('ds_read_b32 v6, v5 offset:4')
    A('s_waitcnt lgkmcnt(0)')
    A('v_readfirstlane_b32 %s, v6' % sK)
    A('s_nop 1')
    A('s_cmp_ge_u32 %s, 1' % sK)
    A('s_cbranch_scc1 L_go')
    A('s_sleep %d' % (12 if 'ls' in dbg else 4))
    A('s_branch L_spin3')
    lab('L_go')
    stamp(10)
    C('fetch the tagged rows until every one of them carries the tag of this launch (bounded)')
    A('s_mov_b32 %s, 0' % sK)
    fO = 84
    lab('L_spin2')
    A('buffer_load_dwordx4 v[12:15], v28, %s, %s offen sc1' % (srd(rWS), sT))
    for q in range(4):
        A('buffer_load_dwordx4 %s, v%d, %s, %s offen sc1' % (vr(fO + 4 * q, 4), 24 + q, srd(rWS), sT2))
    A('s_add_u32 %s, %s, 1' % (sK, sK))
    A('s_waitcnt vmcnt(4)')
    A('v_cmp_ne_u32 vcc, %s, v14' % sTag)
    A('s_and_b64 s[58:59], vcc, %s' % MB)
    for q in range(4):
        A('s_waitcnt vmcnt(%d)' % (3 - q))
        A('v_perm_b32 v16, %s, %s, s56' % (v(fO + 4 * q + 1), v(fO + 4 * q)))
        A('v_perm_b32 v17, %s, %s, s57' % (v(fO + 4 * q + 3), v(fO + 4 * q + 2)))
        A('v_or_b32 v16, v16, v17')
        A('v_cmp_ne_u32 vcc, %s, v16' % sTag)
        A('s_and_b64 vcc, vcc, %s' % MJ[q])
        A('s_or_b64 s[58:59], s[58:59], vcc')
    A('s_cbranch_scc0 L_got')
    if 'norows' in dbg: A('s_branch L_got')
    A('s_cmp_ge_u32 %s, 0x4000' % sK)
    A('s_cbranch_scc1 L_got')
    A('s_sleep %d' % SLEEP)
    A('s_branch L_spin2')
    lab('L_got')
    stamp(5)
    if ts == 1: A('v_writelane_b32 %s, %s, 16' % (v(vTS), sK))
    A('v_mov_b32 v7, 0x%08x' % SENT_MC)
    A('v_cndmask_b32 v12, v7, v12, %s' % MB)
    C('the own column of the own foreign part never left the registers')
    A('s_cmp_eq_u32 %s, 0' % sF)
    A('s_cbranch_scc1 L_noown')
    A('v_cmp_eq_u32 vcc, %s, v0' % sI)
    A('v_subrev_u32 v8, v1, %s' % sI)
    A('s_nop 0')
    A('v_cndmask_b32 v12, v12, v134, vcc')
    A('v_cndmask_b32 v13, v13, v135, vcc')
    for q in range(4):
        A('v_cmp_eq_u32 vcc, %d, v8' % (2 * q))
        A('s_nop 1')
        for k in range(4):
            A('v_cndmask_b32 %s, %s, %s, vcc' % (v(fO + 4 * q + k), v(fO + 4 * q + k), v(hA + 4 * q + k)))
    lab('L_noown')
    A('v_mov_b32 v8, v12')
    red8('v_max_f32', 'v8')
    A('v_sub_f32 v12, v12, v8')
    A('v_exp_f32 v12, v12')
    A('v_readlane_b32 s52, v8, 0')
    A('v_mul_f32 v13, v12, v13')
    for p in range(8):
        A('v_readlane_b32 s%d, v12, %d' % (44 + p, p))
    red8('v_add_f32', 'v13')
    for q in range(4):
        A('v_mov_b32 v8, s%d' % (44 + 2 * q))
        A('v_mov_b32 v9, s%d' % (45 + 2 * q))
        A('v_cndmask_b32 %s, v8, v9, %s' % (v(hW + q), MA))
    A('v_readlane_b32 s53, v13, 0')
    for r in range(16):
        A('v_and_b32 %s, 0xffffff00, %s' % (v(fO + r), v(fO + r)))
    for k in range(4):
        A('v_mul_f32 %s, %s, %s' % (v(hA + k), v(hW), v(fO + k)))
    for q in range(1, 4):
        for k in range(4):
            A('v_fmac_f32 %s, %s, %s' % (v(hA + k), v(hW + q), v(fO + 4 * q + k)))
    A('v_mov_b32 v16, s53')
    A('v_cndmask_b32 v18, v16, 0, %s' % MA)
    A('s_lshl_b32 %s, %s, 5' % (sT, sI))
    A('s_add_u32 %s, %s, %s' % (sT, sT, sH))
    A('s_lshl_b32 %s, %s, 8' % (sT, sT))
    A('v_lshlrev_b32 v7, 3, v2')
    A('v_lshl_add_u32 v7, v1, 2, v7')
    if 'wbl2' in dbg:
        A('s_and_b32 %s, s2, 0xf8' % sT2)
        A('s_cmp_lg_u32 %s, 24' % sT2)
        A('s_cbranch_scc1 L_nowb')
        A('buffer_wbl2 sc1')
        lab('L_nowb')
    stamp(6)
    A('s_barrier')
    stamp(7)
    oM = 8; oX = 84
    for w in range(NS):
        A('ds_read_b64 %s, v4 offset:%d' % (vr(oM + 2 * w, 2), OWNML + 16 * w))
    for w in range(NS):
        A('ds_read_b128 %s, v3 offset:%d' % (vr(oX + 4 * w, 4), OWN + 1152 * w))
    A('s_waitcnt lgkmcnt(4)')
    A('v_max3_f32 v20, %s, %s, s52' % (v(oM), v(oM + 2)))
    A('v_max3_f32 v20, v20, %s, %s' % (v(oM + 4), v(oM + 6)))
    A('v_mov_b32 v21, v20')
    A('s_nop 1')
    A('v_permlane32_swap_b32 v21, v20')
    A('v_max_f32 v20, v21, v20')
    A('v_sub_f32 v16, s52, v20')
    for w in range(NS):
        A('v_sub_f32 %s, %s, v20' % (v(oM + 2 * w), v(oM + 2 * w)))
    A('v_exp_f32 v16, v16')
    for w in range(NS):
        A('v_exp_f32 %s, %s' % (v(oM + 2 * w), v(oM + 2 * w)))
    A('v_mul_f32 v18, v18, v16')
    A('v_pk_mul_f32 %s, %s, v[16:17] op_sel_hi:[1,0]' % (vr(hA, 2), vr(hA, 2)))
    A('v_pk_mul_f32 %s, %s, v[16:17] op_sel_hi:[1,0]' % (vr(hA + 2, 2), vr(hA + 2, 2)))
    for w in range(NS):
        A('v_fmac_f32 v18, %s, %s' % (v(oM + 2 * w), v(oM + 2 * w + 1)))
    A('s_waitcnt lgkmcnt(0)')
    A('v_mov_b32 v19, v18')
    for w in range(NS):
        for k in (0, 2):
            A('v_pk_fma_f32 %s, %s, %s, %s op_sel_hi:[1,0,1]' % (vr(hA + k, 2), vr(oX + 4 * w + k, 2), vr(oM + 2 * w, 2), vr(hA + k, 2)))
        if w == 0:
            A('v_permlane32_swap_b32 v19, v18')
            A('v_add_f32 v18, v18, v19')
            A('v_rcp_f32 v18, v18')
    A('s_nop 1')
    C('lower half keeps d = 4 c, 4 c + 1 ; upper half 4 c + 2, 4 c + 3')
    A('v_permlane32_swap_b32 %s, %s' % (v(hA), v(hA + 2)))
    A('v_permlane32_swap_b32 %s, %s' % (v(hA + 1), v(hA + 3)))
    A('v_pk_add_f32 %s, %s, %s' % (vr(hA, 2), vr(hA, 2), vr(hA + 2, 2)))
    A('v_pk_mul_f32 %s, %s, v[18:19] op_sel_hi:[1,0]' % (vr(hA, 2), vr(hA, 2)))
    A('v_cvt_pk_bf16_f32 v10, %s, %s' % (v(hA), v(hA + 1)))
    A('buffer_store_dword v10, v7, %s, %s offen%s' % (srd(rX), sT, ' sc0 sc1 nt' if 'oall' in dbg else ' sc1' if 'osc1' in dbg else ' nt' if 'ont' in dbg else ''))
    if ts:
        stamp(8)
        lab('L_tsout')
        A('s_waitcnt vmcnt(0)')
        stamp(9)
        mk_srd(rWS, pws, 0x2000000)
        A('s_lshl_b32 %s, s2, 3' % sT)
        A('s_add_u32 %s, %s, %s' % (sT, sT, sW))
        A('s_lshl_b32 %s, %s, 8' % (sT, sT))
        A('s_add_u32 %s, %s, 0x1000000' % (sT, sT))
        A('v_lshlrev_b32 v1, 2, v0')
        A('buffer_store_dword %s, v1, %s, %s offen' % (v(vTS), srd(rWS), sT))
        if 'dd' in dbg:
            mk_srd(rY, pdbg, 64)
            A('v_readlane_b32 s44, %s, 0' % v(vTS))
            for k, (a_, b_) in enumerate(((3, 17), (1, 20), (17, 6), (9, 9))):
                A('v_readlane_b32 s45, %s, %d' % (v(vTS), a_))
                A('v_readlane_b32 s46, %s, %d' % (v(vTS), b_))
                A('s_cmp_eq_u32 %s, 7' % sW)
                A('s_cselect_b32 s45, s46, s45')
                A('s_sub_u32 s45, s45, s44')
                A('v_mov_b32 v%d, s45' % (4 + k))
            A('s_cmp_eq_u32 %s, 7' % sW)
            A('s_cselect_b32 s47, 16, 0')
            A('s_cmp_eq_u32 %s, 0' % sW)
            A('s_cselect_b32 s46, 1, 0')
            A('s_cmp_eq_u32 %s, 7' % sW)
            A('s_cselect_b32 s46, 1, s46')
            A('s_cmp_eq_u32 s2, 28')
            A('s_cselect_b32 s45, 32, 1024')
            A('s_cmp_eq_u32 s2, 1')
            A('s_cselect_b32 s45, 0, s45')
            A('s_cmp_eq_u32 s46, 0')
            A('s_cselect_b32 s45, 1024, s45')
            A('s_add_u32 s47, s47, s45')
            A('s_mov_b64 exec, 1')
            A('buffer_store_dwordx4 v[4:7], off, %s, s47' % srd(rY))
    lab('L_end')
    A('s_endpgm')
    L.append('.p2align 7')
    L.append('.type L_guess,@object')
    lab('L_guess')
    t = usual_table()
    for x in t: L.append('    .long 0x%08x' % x)
    L.append('.size L_guess, %d' % (4 * len(t)))
    nv = vTS + 1 if ts else NV
    out = header + '; @launch grid=(256,1,1) block=(%d,1,1) lds=%d\n' % ((NS + (2 if CTL else 1)) * 64, LDS)
    out += DOC
    out += '.amdgcn_target "amdgcn-amd-amdhsa--gfx950"\n.text\n.globl %s_kernel\n.p2align 8\n.type %s_kernel,@function\n' % (NAME, NAME)
    out += '\n'.join(L) + '\n'
    out += '''.section .rodata,"a"
.p2align 6
.amdhsa_kernel %s_kernel
  .amdhsa_next_free_vgpr %d
  .amdhsa_next_free_sgpr 102
  .amdhsa_accum_offset %d
  .amdhsa_group_segment_fixed_size 0
  .amdhsa_kernarg_size 64
  .amdhsa_user_sgpr_count 2
  .amdhsa_user_sgpr_kernarg_segment_ptr 1
  .amdhsa_system_sgpr_workgroup_id_x 1
.end_amdhsa_kernel
''' % (NAME, nv, (nv + 3) // 4 * 4)
    return out

def header():
    ref = open('cdna_kernels/%s.s.ref' % NAME).read().splitlines()
    h = []
    for l in ref:
        if l.startswith('; @launch'): break
        h.append(l)
    return '\n'.join(h) + '\n'

if __name__ == '__main__':
    import argparse
    ap = argparse.ArgumentParser()
    ap.add_argument('-o', default='cdna_kernels/%s.s' % NAME)
    ap.add_argument('--pol', default='nt')
    ap.add_argument('--ts', type=int, default=0)
    ap.add_argument('--trig', type=int, default=2)
    ap.add_argument('--dbg', default='')
    ap.add_argument('--tpos', type=int, default=0)
    ap.add_argument('--dfirst', action='store_true')
    ap.add_argument('--sleep', type=int, default=16)
    ap.add_argument('--ctl', default='')
    ap.add_argument('--w2', type=int, default=0)
    ap.add_argument('--wm', type=lambda x: int(x, 16), default=0xff)
    ap.add_argument('--xm', type=lambda x: int(x, 16), default=0xf0)
    ap.add_argument('--win', type=int, default=6)
    ap.add_argument('--head', type=int, default=6)
    ap.add_argument('--perm', type=lambda x: int(x, 16), default=0x73406152)
    a = ap.parse_args()
    pol = '' if a.pol == 'def' else a.pol.replace('_', ' ')
    open(a.o, 'w').write(gen(pol, a.ts, header(), a.trig, a.dbg, a.win, a.head, a.perm, a.sleep, a.tpos, a.dfirst, a.w2, a.wm, a.xm, tuple(int(x) for x in a.ctl.split(',')) if a.ctl else None))
```
